```python
import torch

def _softmax(x, axis=-1):
    return torch.softmax(x, dim=axis)
def _gelu(x):
    return torch.nn.functional.gelu(x, approximate="tanh")
def _silu(x):
    return torch.nn.functional.silu(x)
def _sigmoid(x):
    return torch.sigmoid(x)
def _layernorm(x, axis=-1, eps=1e-5):
    m = x.mean(dim=axis, keepdim=True)
    v = x.var(dim=axis, keepdim=True, unbiased=False)
    return (x - m) / torch.sqrt(v + eps)
def _scatter_add(tgt, idx, src, axis=0):
    return tgt.clone().index_add_(axis, idx, src)
def _segment_sum(src, seg, n):
    out = torch.zeros((n,) + src.shape[1:], dtype=src.dtype)
    return out.index_add_(0, seg, src)
def _pad(x, pw):
    flat = tuple(v for pair in reversed(pw) for v in pair)
    return torch.nn.functional.pad(x, flat)

kernel_name = 'parallel_sum__mha_block__swiglu_ffn__prompt'

def setup_inputs():

    _w = (lambda a: (lambda t: t.to(torch.bfloat16) if t.is_floating_point() else t)(torch.as_tensor(a)))
    def _A_setup():
        B, S, D, H = 1, 2048, 512, 32
        return {
            "x": _w((lambda *s: torch.randn(*s, dtype=torch.bfloat16) * 0.05)(B, S, D)),
            "wqkv": _w((lambda *s: torch.randn(*s, dtype=torch.bfloat16) * 0.2)(D, 3 * D)),
            "wo": _w((lambda *s: torch.randn(*s, dtype=torch.bfloat16) * 0.1)(D, D)),
        }
    _A_in = _A_setup()

    def _B_setup():
        B, S, D, F = 1, 2048, 512, 1376
        return {
            "x": _w((lambda *s: torch.randn(*s, dtype=torch.bfloat16) * 0.05)(B, S, D)),
            "w_gate": _w((lambda *s: torch.randn(*s, dtype=torch.bfloat16) * 0.1)(D, F)),
            "w_up": _w((lambda *s: torch.randn(*s, dtype=torch.bfloat16) * 0.1)(D, F)),
            "w_down": _w((lambda *s: torch.randn(*s, dtype=torch.bfloat16) * 0.1)(F, D)),
        }
    _B_in = _B_setup()

    return {
        "A_x": _A_in["x"],
        "A_wqkv": _A_in["wqkv"],
        "A_wo": _A_in["wo"],
        "B_x": _B_in["x"],
        "B_w_gate": _B_in["w_gate"],
        "B_w_up": _B_in["w_up"],
        "B_w_down": _B_in["w_down"],
    }

def reference(A_x, A_wqkv, A_wo, B_x, B_w_gate, B_w_up, B_w_down):
    def _A_ref(x, wqkv, wo):
        B, S, D = x.shape
        H = 32
        Dh = D // H
        qkv = (lambda x, *d: x.permute(*d))((x @ wqkv).reshape(B, S, 3, H, Dh), 2, 0, 3, 1, 4)
        q, k, v = qkv[0], qkv[1], qkv[2]
        scores = torch.einsum("bhqd,bhkd->bhqk", q, k) * (Dh ** -0.5)
        p = _softmax(scores, axis=-1)
        o = torch.einsum("bhqk,bhkd->bhqd", p, v)
        return (lambda x, *d: x.permute(*d))(o, 0, 2, 1, 3).reshape(B, S, D) @ wo

    def _B_ref(x, w_gate, w_up, w_down):
        g = _silu(x @ w_gate)
        u = x @ w_up
        return (g * u) @ w_down

    x = A_x
    xn = _layernorm(x, axis=-1)
    return x + _A_ref(xn, A_wqkv, A_wo) + _B_ref(xn, B_w_gate, B_w_up, B_w_down)
```

```python
import sys

OUT = "parallel_sum__mha_block__swiglu_ffn__prompt.s"

WS_Q = 0
WS_K = 2 << 20
WS_VT = 4 << 20
WS_H = 6 << 20
WS_O = 12 << 20
WS_SIZE = 16 << 20

LOG2E = 1.4426950408889634
QSCALE = 0.25 * LOG2E

import struct
def f32(x):
    return "0x%08x" % struct.unpack("<I", struct.pack("<f", x))[0]

class Asm:
    def __init__(self):
        self.l = []
    def __call__(self, s):
        for line in s.strip("\n").split("\n"):
            self.l.append("    " + line.strip())
    def label(self, n):
        self.l.append(n + ":")
    def raw(self, s):
        self.l.append(s)
    def text(self):
        return "\n".join(self.l) + "\n"

def vr(a, n):
    return f"v[{a}:{a+n-1}]"

def kernel_head(a, name):
    a.raw(f".globl {name}")
    a.raw(".p2align 8")
    a.raw(f".type {name},@function")
    a.label(name)

def descriptor(name, vgpr, sgpr=102):
    acc = (vgpr + 3) // 4 * 4
    return f""".amdhsa_kernel {name}
  .amdhsa_next_free_vgpr {vgpr}
  .amdhsa_next_free_sgpr {sgpr}
  .amdhsa_accum_offset {acc}
  .amdhsa_group_segment_fixed_size 0
  .amdhsa_kernarg_size 80
  .amdhsa_user_sgpr_count 2
  .amdhsa_user_sgpr_kernarg_segment_ptr 1
  .amdhsa_system_sgpr_workgroup_id_x 1
.end_amdhsa_kernel
"""

def gen_k1(a):
    kernel_head(a, "k1_kernel")
    XA = 128
    ACC = 96
    FR = 64
    a(f"""
    s_cmp_ge_u32 s2, 256
    s_cbranch_scc1 K1_end
    s_load_dwordx4 s[4:7], s[0:1], 0
    s_load_dwordx4 s[8:11], s[0:1], 32
    s_load_dwordx2 s[12:13], s[0:1], 72
    v_lshrrev_b32 v1, 6, v0
    v_and_b32 v2, 63, v0
    s_nop 0
    v_readfirstlane_b32 s3, v1
    s_and_b32 s14, s2, 7
    s_lshl_b32 s14, s14, 2
    s_lshr_b32 s15, s2, 3
    s_and_b32 s15, s15, 3
    s_add_u32 s14, s14, s15
    s_lshr_b32 s15, s2, 5
    s_lshl_b32 s24, s14, 2
    s_min_u32 s25, s14, 6
    s_add_u32 s24, s24, s25
    s_cmp_lt_u32 s14, 6
    s_cselect_b32 s25, 5, 4
    s_lshl_b32 s26, s15, 8
    s_lshl_b32 s27, s3, 5
    s_add_u32 s26, s26, s27
    v_and_b32 v3, 31, v2
    v_lshrrev_b32 v4, 5, v2
    v_add_u32 v5, s26, v3
    v_lshlrev_b32 v6, 10, v5
    v_lshl_add_u32 v6, v4, 4, v6
    s_waitcnt lgkmcnt(0)
    s_mov_b32 s16, s4
    s_mov_b32 s17, s5
    s_mov_b32 s18, 0x200000
    s_mov_b32 s19, 0x00020000
    s_mov_b32 s20, s12
    s_mov_b32 s21, s13
    s_mov_b32 s22, {WS_SIZE}
    s_mov_b32 s23, 0x00020000
    """)
    for j in range(32):
        a(f"buffer_load_dwordx4 {vr(XA+4*j,4)}, v6, s[16:19], 0 offen offset:{32*j}")
    a(f"""
    v_lshrrev_b32 v7, 2, v2
    v_and_b32 v8, 3, v2
    s_mov_b32 s28, 3072
    v_mul_lo_u32 v9, v7, s28
    v_lshl_add_u32 v9, v8, 4, v9
    v_mov_b32 v11, s7
    v_add_co_u32 v10, vcc, s6, v9
    s_nop 1
    v_addc_co_u32 v11, vcc, 0, v11, vcc
    s_mov_b32 s28, 2752
    v_mul_lo_u32 v9, v7, s28
    v_and_b32 v12, 1, v2
    v_lshl_add_u32 v9, v12, 4, v9
    v_and_b32 v12, 2, v2
    v_cmp_ne_u32 vcc, 0, v12
    v_mov_b32 v12, s8
    v_mov_b32 v13, s9
    v_mov_b32 v14, s10
    v_mov_b32 v15, s11
    v_cndmask_b32 v12, v12, v14, vcc
    v_cndmask_b32 v13, v13, v15, vcc
    s_nop 1
    v_add_co_u32 v12, vcc, v12, v9
    s_nop 1
    v_addc_co_u32 v13, vcc, 0, v13, vcc
    """)
    uid = [0]
    def unit_load(unit_s, buf):
        n = uid[0]; uid[0] += 1
        a(f"""
        s_lshl_b32 s29, s3, 2
        s_cmp_ge_u32 {unit_s}, 48
        s_cbranch_scc1 K1_ldf{n}
        s_mul_i32 s30, s29, {16*3072}
        s_lshl_b32 s31, {unit_s}, 6
        s_add_u32 s30, s30, s31
        """)
        for i in range(4):
            a(f"""
            s_lshl_b32 s31, s3, 12
            s_add_u32 s31, s31, {buf*32768 + i*1024}
            s_mov_b32 m0, s31
            v_add_co_u32 v16, vcc, s30, v10
            s_nop 1
            v_addc_co_u32 v17, vcc, 0, v11, vcc
            s_add_u32 s30, s30, {16*3072}
            global_load_lds_dwordx4 v[16:17], off
            """)
        a(f"s_branch K1_ldd{n}")
        a.label(f"K1_ldf{n}")
        a(f"""
        s_mul_i32 s30, s29, {16*2752}
        s_sub_u32 s31, {unit_s}, 48
        s_lshl_b32 s31, s31, 5
        s_add_u32 s30, s30, s31
        """)
        for i in range(4):
            a(f"""
            s_lshl_b32 s31, s3, 12
            s_add_u32 s31, s31, {buf*32768 + i*1024}
            s_mov_b32 m0, s31
            v_add_co_u32 v16, vcc, s30, v12
            s_nop 1
            v_addc_co_u32 v17, vcc, 0, v13, vcc
            s_add_u32 s30, s30, {16*2752}
            global_load_lds_dwordx4 v[16:17], off
            """)
        a.label(f"K1_ldd{n}")
    for b in range(4):
        a(f"s_add_u32 s32, s24, {b}")
        unit_load("s32", b)
    a("""
    s_waitcnt vmcnt(16)
    v_mov_b32 v20, 0x3f803f80
    v_mov_b32 v21, 0
    v_mov_b32 v22, 0
    """)
    for j in range(0, 128, 2):
        a(f"v_dot2_f32_bf16 v21, v{XA+j}, v20, v21")
        a(f"v_dot2_f32_bf16 v22, v{XA+j+1}, v20, v22")
    a(f"""
    s_nop 3
    v_add_f32 v21, v21, v22
    v_mov_b32 v22, v21
    s_nop 1
    v_permlane32_swap_b32 v21, v22
    s_nop 1
    v_add_f32 v21, v21, v22
    v_mul_f32 v21, {f32(1.0/512)}, v21
    v_cvt_pk_bf16_f32 v22, v21, v21
    v_and_b32 v22, 0xffff0000, v22
    v_sub_f32 v23, v21, v22
    v_mov_b32 v24, 0
    v_mov_b32 v25, 0
    """)
    for j in range(128):
        t = 26 + 2 * (j % 4)
        a(f"""
        v_lshlrev_b32 v{t}, 16, v{XA+j}
        v_and_b32 v{t+1}, 0xffff0000, v{XA+j}
        v_sub_f32 v{t}, v{t}, v22
        v_sub_f32 v{t+1}, v{t+1}, v22
        v_fmac_f32 v24, v{t}, v{t}
        v_fmac_f32 v25, v{t+1}, v{t+1}
        v_cvt_pk_bf16_f32 v{XA+j}, v{t}, v{t+1}
        """)
    a(f"""
    v_add_f32 v24, v24, v25
    v_mov_b32 v25, v24
    s_nop 1
    v_permlane32_swap_b32 v24, v25
    s_nop 1
    v_add_f32 v24, v24, v25
    v_mul_f32 v24, {f32(1.0/512)}, v24
    v_fma_f32 v24, -v23, v23, v24
    v_max_f32 v24, 0, v24
    v_cvt_pk_bf16_f32 v24, v24, v24
    v_and_b32 v24, 0xffff0000, v24
    v_add_f32 v24, {f32(1e-5)}, v24
    v_cvt_pk_bf16_f32 v24, v24, v24
    v_and_b32 v24, 0xffff0000, v24
    v_sqrt_f32 v24, v24
    s_nop 0
    v_cvt_pk_bf16_f32 v24, v24, v24
    v_and_b32 v24, 0xffff0000, v24
    v_rcp_f32 v24, v24
    s_lshl_b32 s29, s3, 7
    s_add_u32 s29, s29, 131072
    v_lshl_add_u32 v25, v3, 2, s29
    ds_write_b32 v25, v24
    v_lshl_add_u32 v25, v4, 4, s29
    """)
    a("""
    v_lshlrev_b32 v26, 3, v4
    v_and_b32 v27, 15, v2
    v_lshrrev_b32 v27, 2, v27
    v_add_u32 v26, v26, v27
    v_lshlrev_b32 v26, 6, v26
    v_lshrrev_b32 v27, 4, v2
    v_and_b32 v27, 1, v27
    v_lshl_add_u32 v26, v27, 5, v26
    v_and_b32 v27, 3, v2
    v_lshl_add_u32 v26, v27, 3, v26
    v_lshlrev_b32 v28, 5, v5
    v_lshl_add_u32 v28, v4, 3, v28
    v_lshlrev_b32 v29, 12, v3
    v_lshl_add_u32 v29, v4, 4, v29
    s_lshl_b32 s29, s26, 1
    v_add_u32 v29, s29, v29
    s_mov_b32 s28, 2752
    v_mul_lo_u32 v30, v5, s28
    v_lshl_add_u32 v30, v4, 3, v30
    s_mov_b32 s33, 0
    """)
    a.label("K1_loop")
    for i, n in enumerate([12, 10, 8, 6, 6]):
        a(f"""
        s_cmp_lg_u32 s33, {i}
        s_cbranch_scc1 K1_w{i}
        s_waitcnt vmcnt({n})
        """)
        a.label(f"K1_w{i}")
    a("""
    s_waitcnt lgkmcnt(0)
    s_barrier
    s_cmp_lg_u32 s33, 1
    s_cbranch_scc1 K1_nold
    s_cmp_lg_u32 s25, 5
    s_cbranch_scc1 K1_nold
    s_add_u32 s32, s24, 4
    """)
    unit_load("s32", 0)
    a.label("K1_nold")
    a("""
    s_add_u32 s32, s24, s33
    s_and_b32 s29, s33, 3
    s_lshl_b32 s29, s29, 15
    v_add_u32 v31, s29, v26
    s_cmp_ge_u32 s32, 48
    s_cbranch_scc1 K1_mm0
    s_cmp_ge_u32 s32, 32
    s_cbranch_scc1 K1_mm1
    """)
    def unit_mfma(orient):
        def rd(j):
            s = FR + 4 * (j % 4)
            a(f"ds_read_b64_tr_b16 {vr(s,2)}, v31 offset:{1024*j}")
            a(f"ds_read_b64_tr_b16 {vr(s+2,2)}, v31 offset:{1024*j+256}")
        for j in range(4):
            rd(j)
        for j in range(32):
            a(f"s_waitcnt lgkmcnt({2*min(3,31-j)})")
            s = FR + 4 * (j % 4)
            c = "0" if j == 0 else vr(ACC, 16)
            w, x = vr(s, 4), vr(XA + 4 * j, 4)
            if orient == 0:
                a(f"v_mfma_f32_32x32x16_bf16 {vr(ACC,16)}, {w}, {x}, {c}")
            else:
                a(f"v_mfma_f32_32x32x16_bf16 {vr(ACC,16)}, {x}, {w}, {c}")
            if j + 4 < 32:
                rd(j + 4)
        a("s_nop 15")
    a.label("K1_mm0")
    unit_mfma(0)
    a("""
    s_cmp_ge_u32 s32, 48
    s_cbranch_scc1 K1_epf
    """)
    a(f"""
    s_lshr_b32 s29, s32, 4
    s_lshl_b32 s29, s29, 21
    s_and_b32 s30, s32, 15
    s_lshl_b32 s30, s30, 17
    s_add_u32 s29, s29, s30
    s_add_u32 s30, s29, 65536
    s_cmp_lt_u32 s32, 16
    s_cselect_b32 s31, {f32(QSCALE)}, 1.0
    v_mul_f32 v32, s31, v24
    """)
    for r in range(16):
        a(f"v_mul_f32 v{ACC+r}, v32, v{ACC+r}")
    for r in range(8):
        a(f"v_cvt_pk_bf16_f32 v{40+r}, v{ACC+2*r}, v{ACC+2*r+1}")
    a("""
    buffer_store_dwordx2 v[40:41], v28, s[20:23], s29 offen
    buffer_store_dwordx2 v[42:43], v28, s[20:23], s29 offen offset:16
    buffer_store_dwordx2 v[44:45], v28, s[20:23], s30 offen
    buffer_store_dwordx2 v[46:47], v28, s[20:23], s30 offen offset:16
    s_branch K1_next
    """)
    a.label("K1_epf")
    a(f"""
    s_sub_u32 s29, s32, 48
    s_lshl_b32 s29, s29, 5
    s_add_u32 s29, s29, {WS_H}
    v_mul_f32 v32, {f32(-LOG2E)}, v24
    v_mul_f32 v33, v24, v24
    """)
    for r in range(8):
        a(f"v_mul_f32 v{40+r}, v32, v{ACC+r}")
    for r in range(8):
        a(f"v_exp_f32 v{40+r}, v{40+r}")
    for r in range(8):
        a(f"v_mul_f32 v{ACC+r}, v{ACC+r}, v{ACC+8+r}")
    for r in range(8):
        a(f"v_add_f32 v{40+r}, 1.0, v{40+r}")
    for r in range(8):
        a(f"v_rcp_f32 v{40+r}, v{40+r}")
    for r in range(8):
        a(f"v_mul_f32 v{ACC+r}, v33, v{ACC+r}")
    for r in range(8):
        a(f"v_mul_f32 v{ACC+r}, v{40+r}, v{ACC+r}")
    for r in range(4):
        a(f"v_cvt_pk_bf16_f32 v{40+r}, v{ACC+2*r}, v{ACC+2*r+1}")
    a("""
    buffer_store_dwordx2 v[40:41], v30, s[20:23], s29 offen
    buffer_store_dwordx2 v[42:43], v30, s[20:23], s29 offen offset:16
    s_branch K1_next
    """)
    a.label("K1_mm1")
    unit_mfma(1)
    a(f"""
    ds_read_b128 v[40:43], v25
    ds_read_b128 v[44:47], v25 offset:32
    ds_read_b128 v[48:51], v25 offset:64
    ds_read_b128 v[52:55], v25 offset:96
    s_sub_u32 s29, s32, 32
    s_lshl_b32 s29, s29, 17
    s_add_u32 s29, s29, {WS_VT}
    s_waitcnt lgkmcnt(0)
    """)
    for r in range(16):
        a(f"v_mul_f32 v{ACC+r}, v{40+r}, v{ACC+r}")
    for r in range(8):
        a(f"v_cvt_pk_bf16_f32 v{40+r}, v{ACC+2*r}, v{ACC+2*r+1}")
    a("""
    buffer_store_dwordx4 v[40:43], v29, s[20:23], s29 offen
    buffer_store_dwordx4 v[44:47], v29, s[20:23], s29 offen offset:32
    """)
    a.label("K1_next")
    a("""
    s_add_u32 s33, s33, 1
    s_cmp_lt_u32 s33, s25
    s_cbranch_scc1 K1_loop
    """)
    a.label("K1_end")
    a("s_endpgm")

def gen_k2(a):
    kernel_head(a, "k2_kernel")
    VROW = 4112
    VBASE = 65536
    a(f"""
    s_cmp_ge_u32 s2, 256
    s_cbranch_scc1 K2_end
    s_load_dwordx2 s[4:5], s[0:1], 72
    v_lshrrev_b32 v1, 6, v0
    v_and_b32 v2, 63, v0
    s_nop 0
    v_readfirstlane_b32 s3, v1
    s_and_b32 s14, s2, 7
    s_lshl_b32 s14, s14, 2
    s_lshr_b32 s15, s2, 3
    s_and_b32 s15, s15, 3
    s_add_u32 s14, s14, s15
    s_lshr_b32 s15, s2, 5
    s_lshl_b32 s16, s15, 8
    s_lshl_b32 s17, s3, 5
    s_add_u32 s16, s16, s17
    s_lshl_b32 s17, s14, 16
    v_and_b32 v3, 31, v2
    v_lshrrev_b32 v4, 5, v2
    v_add_u32 v5, s16, v3
    v_lshlrev_b32 v6, 5, v5
    v_lshl_add_u32 v6, v4, 4, v6
    v_lshlrev_b32 v7, 4, v2
    s_waitcnt lgkmcnt(0)
    s_mov_b32 s8, s4
    s_mov_b32 s9, s5
    s_mov_b32 s10, {WS_SIZE}
    s_mov_b32 s11, 0x00020000
    buffer_load_dwordx4 v[8:11], v6, s[8:11], s17 offen
    s_lshl_b32 s18, s3, 13
    s_add_u32 s19, s17, s18
    s_add_u32 s19, s19, {WS_K}
    """)
    for i in range(8):
        a(f"""
        s_add_u32 s20, s18, {i*1024}
        s_mov_b32 m0, s20
        s_add_u32 s21, s19, {i*1024}
        buffer_load_dwordx4 v7, s[8:11], s21 offen lds
        """)
    a(f"""
    s_add_u32 s19, s17, s18
    s_add_u32 s19, s19, {WS_VT}
    s_lshl_b32 s22, s3, 1
    s_mul_i32 s22, s22, {VROW}
    s_add_u32 s22, s22, {VBASE}
    """)
    for i in range(8):
        a(f"""
        s_add_u32 s20, s22, {(i>>2)*VROW + (i&3)*1024}
        s_mov_b32 m0, s20
        s_add_u32 s21, s19, {i*1024}
        buffer_load_dwordx4 v7, s[8:11], s21 offen lds
        """)
    X = 64
    Y = 128
    FX = 16
    FY = 32
    a(f"""
    v_lshlrev_b32 v12, 5, v3
    v_lshl_add_u32 v12, v4, 4, v12
    v_mov_b32 v13, 0xff7fffff
    v_mov_b32 v14, 0xff7fffff
    """)
    for r in range(64):
        a(f"v_mov_b32 v{Y+r}, 0xff7fffff")
    a("""
    s_waitcnt vmcnt(8)
    s_barrier
    """)
    for k in range(4):
        a(f"ds_read_b128 {vr(FX+4*k,4)}, v12 offset:{1024*k}")
    a("s_mov_b32 s23, 0")
    a.label("K2_p1")
    for k in range(4):
        a(f"ds_read_b128 {vr(FY+4*k,4)}, v12 offset:{1024*(4+k)}")
    a("s_waitcnt lgkmcnt(4)")
    def maxes(S):
        for r in range(0, 16, 4):
            a(f"v_max3_f32 v13, v13, v{S+r}, v{S+r+1}")
            a(f"v_max3_f32 v14, v14, v{S+r+2}, v{S+r+3}")
    for k in range(4):
        a(f"v_mfma_f32_32x32x16_bf16 {vr(X+16*k,16)}, {vr(FX+4*k,4)}, v[8:11], 0")
        maxes(Y + 16 * k)
    for k in range(4):
        a(f"ds_read_b128 {vr(FX+4*k,4)}, v12 offset:{1024*(8+k)}")
    a("s_waitcnt lgkmcnt(4)")
    for k in range(4):
        a(f"v_mfma_f32_32x32x16_bf16 {vr(Y+16*k,16)}, {vr(FY+4*k,4)}, v[8:11], 0")
        maxes(X + 16 * k)
    a("""
    v_add_u32 v12, 8192, v12
    s_add_u32 s23, s23, 1
    s_cmp_lt_u32 s23, 8
    s_cbranch_scc1 K2_p1
    s_nop 15
    """)
    for k in range(4):
        maxes(Y + 16 * k)
    CM = 48
    SA = 64
    SB = 80
    O = 96
    KB = [16, 20]
    VB = [[24, 28], [32, 36]]
    P = [40, 44]
    a(f"""
    v_max_f32 v13, v13, v14
    v_mov_b32 v14, v13
    s_nop 1
    v_permlane32_swap_b32 v13, v14
    s_nop 1
    v_max_f32 v13, v13, v14
    v_sub_f32 v13, 0, v13
    """)
    for r in range(16):
        a(f"v_mov_b32 v{CM+r}, v13")
        a(f"v_mov_b32 v{O+r}, 0")
    a(f"""
    s_waitcnt lgkmcnt(0)
    v_cmp_eq_u32 vcc, 16, v3
    v_mov_b32 v15, 0x3f803f80
    s_nop 1
    v_cndmask_b32 v15, 0, v15, vcc
    """)
    for r in range(16):
        a(f"v_mov_b32 v{24+r}, v15")
    a(f"""
    v_lshlrev_b32 v12, 5, v3
    v_lshl_add_u32 v12, v4, 4, v12
    s_mov_b32 s24, {VROW}
    v_mul_lo_u32 v15, v3, s24
    v_lshl_add_u32 v15, v4, 4, v15
    v_add_u32 v15, {VBASE}, v15
    s_mov_b32 s26, 0x0000ffff
    s_mov_b32 s27, 0x0000ffff
    s_waitcnt vmcnt(0)
    s_barrier
    ds_read_b128 {vr(KB[0],4)}, v12
    ds_read_b128 {vr(KB[1],4)}, v12 offset:1024
    s_mov_b64 exec, s[26:27]
    ds_read_b128 {vr(VB[0][0],4)}, v15
    ds_read_b128 {vr(VB[0][1],4)}, v15 offset:32
    s_mov_b64 exec, -1
    s_waitcnt lgkmcnt(0)
    v_mfma_f32_32x32x16_bf16 {vr(SA,16)}, {vr(KB[0],4)}, v[8:11], {vr(CM,16)}
    s_mov_b32 s23, 0
    """)
    a.label("K2_p2")
    S = [SA, SB]
    for t in range(2):
        cur, nxt = S[t], S[1 - t]
        a(f"""
        s_waitcnt lgkmcnt(0)
        ds_read_b128 {vr(KB[t],4)}, v12 offset:{1024*(t+2)}
        s_mov_b64 exec, s[26:27]
        ds_read_b128 {vr(VB[1-t][0],4)}, v15 offset:{64*(t+1)}
        ds_read_b128 {vr(VB[1-t][1],4)}, v15 offset:{64*(t+1)+32}
        s_mov_b64 exec, -1
        v_mfma_f32_32x32x16_bf16 {vr(nxt,16)}, {vr(KB[1-t],4)}, v[8:11], {vr(CM,16)}
        """)
        for r in range(8):
            a(f"v_exp_f32 v{cur+r}, v{cur+r}")
        for r in range(4):
            a(f"v_cvt_pk_bf16_f32 v{P[0]+r}, v{cur+2*r}, v{cur+2*r+1}")
        for r in range(8, 16):
            a(f"v_exp_f32 v{cur+r}, v{cur+r}")
        a(f"v_mfma_f32_32x32x16_bf16 {vr(O,16)}, {vr(VB[t][0],4)}, {vr(P[0],4)}, {vr(O,16)}")
        for r in range(4):
            a(f"v_cvt_pk_bf16_f32 v{P[1]+r}, v{cur+8+2*r}, v{cur+8+2*r+1}")
        a("s_nop 1")
        a(f"v_mfma_f32_32x32x16_bf16 {vr(O,16)}, {vr(VB[t][1],4)}, {vr(P[1],4)}, {vr(O,16)}")
    a(f"""
    v_add_u32 v12, 2048, v12
    v_add_u32 v15, 128, v15
    s_add_u32 s23, s23, 1
    s_cmp_lt_u32 s23, 32
    s_cbranch_scc1 K2_p2
    s_nop 15
    s_waitcnt lgkmcnt(0)
    v_mov_b32 v13, v{O+8}
    v_mov_b32 v14, v{O+8}
    s_nop 1
    v_permlane32_swap_b32 v13, v14
    s_nop 1
    v_rcp_f32 v13, v13
    s_nop 0
    """)
    for r in range(8):
        a(f"v_mul_f32 v{O+r}, v13, v{O+r}")
    for r in range(4):
        a(f"v_cvt_pk_bf16_f32 v{40+r}, v{O+2*r}, v{O+2*r+1}")
    a(f"""
    v_lshlrev_b32 v6, 10, v5
    v_lshl_add_u32 v6, v4, 3, v6
    s_lshl_b32 s20, s14, 5
    s_add_u32 s20, s20, {WS_O}
    buffer_store_dwordx2 v[40:41], v6, s[8:11], s20 offen
    buffer_store_dwordx2 v[42:43], v6, s[8:11], s20 offen offset:16
    """)
    a.label("K2_end")
    a("s_endpgm")

def gen_k3(a):
    kernel_head(a, "k3_kernel")
    ACC = 16
    AR = [32, 64]
    FR = 96
    a(f"""
    s_cmp_ge_u32 s2, 256
    s_cbranch_scc1 K3_end
    s_load_dwordx2 s[4:5], s[0:1], 0
    s_load_dwordx2 s[6:7], s[0:1], 16
    s_load_dwordx4 s[8:11], s[0:1], 48
    s_load_dwordx2 s[12:13], s[0:1], 72
    v_lshrrev_b32 v1, 6, v0
    v_and_b32 v2, 63, v0
    s_nop 0
    v_readfirstlane_b32 s3, v1
    s_and_b32 s14, s2, 7
    s_lshl_b32 s14, s14, 2
    s_lshr_b32 s15, s2, 3
    s_and_b32 s15, s15, 3
    s_add_u32 s14, s14, s15
    s_lshr_b32 s15, s2, 5
    s_lshr_b32 s36, s3, 1
    s_and_b32 s37, s3, 1
    s_lshl_b32 s38, s14, 6
    s_lshl_b32 s39, s36, 5
    s_add_u32 s38, s38, s39
    v_and_b32 v3, 31, v2
    v_lshrrev_b32 v4, 5, v2
    v_add_u32 v5, s38, v3
    s_waitcnt lgkmcnt(0)
    s_mov_b32 s16, s4
    s_mov_b32 s17, s5
    s_mov_b32 s18, 0x200000
    s_mov_b32 s19, 0x00020000
    s_mov_b32 s20, s6
    s_mov_b32 s21, s7
    s_mov_b32 s22, {512*1024}
    s_mov_b32 s23, 0x00020000
    s_mov_b32 s24, s8
    s_mov_b32 s25, s9
    s_mov_b32 s26, {1376*1024}
    s_mov_b32 s27, 0x00020000
    s_mov_b32 s28, s10
    s_mov_b32 s29, s11
    s_mov_b32 s30, 0x200000
    s_mov_b32 s31, 0x00020000
    s_mov_b32 s32, s12
    s_mov_b32 s33, s13
    s_mov_b32 s34, {WS_SIZE}
    s_mov_b32 s35, 0x00020000
    v_lshlrev_b32 v6, 10, v5
    v_lshl_add_u32 v6, v4, 4, v6
    v_add_u32 v6, {WS_O}, v6
    s_mov_b32 s40, 2752
    v_mul_lo_u32 v7, v5, s40
    v_lshl_add_u32 v7, v4, 4, v7
    v_add_u32 v7, {WS_H}, v7
    v_lshrrev_b32 v8, 3, v2
    v_and_b32 v9, 7, v2
    v_and_b32 v10, 2, v8
    v_lshlrev_b32 v10, 1, v10
    v_xor_b32 v9, v9, v10
    s_lshl_b32 s40, s3, 5
    v_add_u32 v8, s40, v8
    v_lshlrev_b32 v8, 10, v8
    v_lshl_add_u32 v8, v9, 4, v8
    s_lshl_b32 s40, s15, 7
    v_add_u32 v8, s40, v8
    v_lshlrev_b32 v9, 3, v4
    v_and_b32 v10, 15, v2
    v_lshrrev_b32 v10, 2, v10
    v_add_u32 v9, v9, v10
    v_lshlrev_b32 v9, 7, v9
    v_lshrrev_b32 v10, 3, v2
    v_and_b32 v10, 1, v10
    v_xor_b32 v10, s37, v10
    v_lshl_add_u32 v9, v10, 6, v9
    v_lshrrev_b32 v10, 4, v2
    v_and_b32 v10, 1, v10
    v_lshl_add_u32 v9, v10, 5, v9
    v_and_b32 v10, 3, v2
    v_lshl_add_u32 v9, v10, 3, v9
    s_lshl_b32 s41, s3, 12
    """)
    NCH = 15
    def wload(c):
        buf = c % 3
        srd = "s[20:23]" if c < 4 else "s[24:27]"
        kbase = (c if c < 4 else c - 4) * 128 * 1024
        for i in range(4):
            a(f"""
            s_add_u32 s42, s41, {buf*16384 + i*1024}
            s_mov_b32 m0, s42
            s_mov_b32 s43, {kbase + i*8*1024}
            buffer_load_dwordx4 v8, {srd}, s43 offen lds
            """)
    def aload(c):
        st = AR[c % 2]
        ns = 6 if c == NCH - 1 else 8
        off = "v6" if c < 4 else "v7"
        kb = (c if c < 4 else c - 4) * 256
        a(f"s_mov_b32 s44, {kb}")
        for s in range(ns):
            a(f"buffer_load_dwordx4 {vr(st+4*s,4)}, {off}, s[32:35], s44 offen offset:{32*s}")
    wload(0)
    aload(0)
    wload(1)
    first = True
    for c in range(NCH):
        ns = 6 if c == NCH - 1 else 8
        a(f"s_waitcnt vmcnt({0 if c == NCH-1 else 4})")
        a("s_barrier")
        if c + 1 < NCH:
            aload(c + 1)
        if c + 2 < NCH:
            wload(c + 2)
        lb = (c % 3) * 16384
        def rd(s):
            f = FR + 4 * (s % 4)
            a(f"ds_read_b64_tr_b16 {vr(f,2)}, v9 offset:{lb + 2048*s}")
            a(f"ds_read_b64_tr_b16 {vr(f+2,2)}, v9 offset:{lb + 2048*s + 512}")
        for s in range(4):
            rd(s)
        for s in range(ns):
            a(f"s_waitcnt lgkmcnt({2*min(3, ns-1-s)})")
            f = FR + 4 * (s % 4)
            cc = "0" if first else vr(ACC, 16)
            first = False
            a(f"v_mfma_f32_32x32x16_bf16 {vr(ACC,16)}, {vr(f,4)}, {vr(AR[c%2]+4*s,4)}, {cc}")
            if s + 4 < ns:
                rd(s + 4)
    a(f"""
    v_lshlrev_b32 v6, 10, v5
    v_lshl_add_u32 v6, v4, 3, v6
    s_lshl_b32 s40, s15, 7
    s_lshl_b32 s42, s37, 6
    s_add_u32 s40, s40, s42
    buffer_load_dwordx2 v[32:33], v6, s[16:19], s40 offen
    buffer_load_dwordx2 v[34:35], v6, s[16:19], s40 offen offset:16
    buffer_load_dwordx2 v[36:37], v6, s[16:19], s40 offen offset:32
    buffer_load_dwordx2 v[38:39], v6, s[16:19], s40 offen offset:48
    s_nop 15
    s_waitcnt vmcnt(0)
    """)
    for r in range(8):
        a(f"""
        v_lshlrev_b32 v40, 16, v{32+r}
        v_and_b32 v41, 0xffff0000, v{32+r}
        v_add_f32 v{ACC+2*r}, v40, v{ACC+2*r}
        v_add_f32 v{ACC+2*r+1}, v41, v{ACC+2*r+1}
        v_cvt_pk_bf16_f32 v{48+r}, v{ACC+2*r}, v{ACC+2*r+1}
        """)
    a("""
    buffer_store_dwordx2 v[48:49], v6, s[28:31], s40 offen
    buffer_store_dwordx2 v[50:51], v6, s[28:31], s40 offen offset:16
    buffer_store_dwordx2 v[52:53], v6, s[28:31], s40 offen offset:32
    buffer_store_dwordx2 v[54:55], v6, s[28:31], s40 offen offset:48
    """)
    a.label("K3_end")
    a("s_endpgm")

def main():
    a = Asm()
    a.raw("; @launch kernel=k1_kernel grid=(256,1,1) block=(512,1,1) lds=132096")
    a.raw("; @launch kernel=k2_kernel grid=(256,1,1) block=(512,1,1) lds=131584")
    a.raw("; @launch kernel=k3_kernel grid=(256,1,1) block=(256,1,1) lds=49152")
    a.raw('.amdgcn_target "amdgcn-amd-amdhsa--gfx950"')
    a.raw(".text")
    gen_k1(a)
    gen_k2(a)
    gen_k3(a)
    a.raw('.section .rodata,"a"')
    a.raw(".p2align 6")
    a.raw(descriptor("k1_kernel", 256))
    a.raw(".p2align 6")
    a.raw(descriptor("k2_kernel", 192))
    a.raw(".p2align 6")
    a.raw(descriptor("k3_kernel", 112))
    open(OUT, "w").write(a.text())

main()
```

```python
import sys

OUT = "parallel_sum__mha_block__swiglu_ffn__prompt.s"

WS_Q = 0
WS_K = 2 << 20
WS_VT = 4 << 20
WS_A = 6 << 20
WS_WT = 14 << 20
WS_P = 16 << 20
WS_SIZE = 24 << 20

LOG2E = 1.4426950408889634
QSCALE = 0.25 * LOG2E

import struct
def f32(x):
    return "0x%08x" % struct.unpack("<I", struct.pack("<f", x))[0]

class Asm:
    def __init__(self):
        self.l = []
    def __call__(self, s):
        for line in s.strip("\n").split("\n"):
            self.l.append("    " + line.strip())
    def label(self, n):
        self.l.append(n + ":")
    def raw(self, s):
        self.l.append(s)
    def text(self):
        return "\n".join(self.l) + "\n"

STAMP = len(sys.argv) > 1 and sys.argv[1] == "stamp"
if STAMP:
    OUT = "stamped.s"
_st = [0]
STID = int(sys.argv[2]) if len(sys.argv) > 2 else 0
def stamp(a, sbase):
    if not STAMP:
        return
    i = _st[0]; _st[0] += 1
    if i == 0:
        a("s_memrealtime s[58:59]")
    a(f"s_memtime s[{sbase+2*i}:{sbase+2*i+1}]")
    a("s_waitcnt lgkmcnt(0)")
_cs = [0]
def cstamp(a, sbase, sreg, val):
    if not STAMP:
        return
    n = _cs[0]; _cs[0] += 1
    a(f"s_cmp_lg_u32 {sreg}, {val}")
    a(f"s_cbranch_scc1 CST_{n}")
    stamp(a, sbase)
    a.label(f"CST_{n}")

_kid = [0]
def stamp_flush(a, sbase, wg_s="s2", tid=0):
    if not STAMP:
        return
    n = _st[0]; _st[0] = 0
    kid = _kid[0]; _kid[0] += 1
    a(f"""
    s_memrealtime s[{sbase+2*n}:{sbase+2*n+1}]
    s_load_dwordx2 s[96:97], s[0:1], 72
    s_waitcnt lgkmcnt(0)
    s_mov_b32 s98, 0x4000000
    s_mov_b32 s99, 0x00020000
    s_lshl_b32 s93, {wg_s}, 8
    s_add_u32 s93, s93, {(32<<20) + kid*65536}
    v_cmp_eq_u32 vcc, {tid}, v0
    s_and_saveexec_b64 s[94:95], vcc
    s_cbranch_execz STR_{kid}
    v_mov_b32 v1, 0
    """)
    for i in range(n + 1):
        a(f"v_mov_b32 v2, s{sbase+2*i}")
        a(f"buffer_store_dword v2, v1, s[96:99], s93 offen offset:{4*i}")
    a(f"v_mov_b32 v2, s58")
    a(f"buffer_store_dword v2, v1, s[96:99], s93 offen offset:{4*(n+1)}")
    a(f"s_getreg_b32 s92, hwreg(HW_REG_XCC_ID)")
    a(f"v_mov_b32 v2, s92")
    a(f"v_add_u32 v2, 1, v2")
    a(f"buffer_store_dword v2, v1, s[96:99], s93 offen offset:{4*(n+2)}")
    a.label(f"STR_{kid}")
    a("s_mov_b64 exec, s[94:95]")

def vr(a, n):
    return f"v[{a}:{a+n-1}]"

def kernel_head(a, name):
    a.raw(f".globl {name}")
    a.raw(".p2align 8")
    a.raw(f".type {name},@function")
    a.label(name)

def descriptor(name, vgpr, sgpr=102):
    acc = (vgpr + 3) // 4 * 4
    return f""".amdhsa_kernel {name}
  .amdhsa_next_free_vgpr {vgpr}
  .amdhsa_next_free_sgpr {sgpr}
  .amdhsa_accum_offset {acc}
  .amdhsa_group_segment_fixed_size 0
  .amdhsa_kernarg_size 80
  .amdhsa_user_sgpr_count 2
  .amdhsa_user_sgpr_kernarg_segment_ptr 1
  .amdhsa_system_sgpr_workgroup_id_x 1
.end_amdhsa_kernel
"""

class VM:
    def __init__(self):
        self.ops = []
    def add(self, tag, n=1):
        self.ops += [tag] * n
    def wait(self, a, tag):
        last = max(i for i, t in enumerate(self.ops) if t == tag)
        n = len(self.ops) - 1 - last
        assert n <= 63
        a(f"s_waitcnt vmcnt({n})")

def gen_k1(a):
    kernel_head(a, "k1_kernel")
    XA = 128
    ACC = 64
    FR = 40
    NFR = 6
    BUFS = [131072, 0, 32768, 65536]
    EXC = 65536
    STATS = 98304
    a(f"""
    s_cmp_ge_u32 s2, 256
    s_cbranch_scc1 K1_end
    s_load_dwordx4 s[4:7], s[0:1], 0
    s_load_dwordx4 s[8:11], s[0:1], 32
    s_load_dwordx2 s[12:13], s[0:1], 72
    s_load_dwordx2 s[44:45], s[0:1], 16
    s_load_dwordx2 s[48:49], s[0:1], 48
    v_lshrrev_b32 v1, 6, v0
    v_and_b32 v2, 63, v0
    s_nop 0
    v_readfirstlane_b32 s3, v1
    s_and_b32 s14, s2, 7
    s_lshl_b32 s14, s14, 1
    s_lshr_b32 s15, s2, 3
    s_and_b32 s15, s15, 1
    s_add_u32 s14, s14, s15
    s_lshr_b32 s15, s2, 4
    s_and_b32 s40, s3, 3
    s_lshr_b32 s41, s3, 2
    s_lshl_b32 s26, s15, 7
    s_lshl_b32 s27, s40, 5
    s_add_u32 s26, s26, s27
    v_and_b32 v3, 31, v2
    v_lshrrev_b32 v4, 5, v2
    v_add_u32 v5, s26, v3
    s_waitcnt lgkmcnt(0)
    s_mov_b32 s16, s4
    s_mov_b32 s17, s5
    s_mov_b32 s18, 0x200000
    s_mov_b32 s19, 0x00020000
    s_mov_b32 s20, s12
    s_mov_b32 s21, s13
    s_mov_b32 s22, {WS_SIZE}
    s_mov_b32 s23, 0x00020000
    s_mov_b32 s36, s6
    s_mov_b32 s37, s7
    s_mov_b32 s38, {512*3072}
    s_mov_b32 s39, 0x00020000
    s_lshl_b32 s29, s40, 15
    s_lshl_b32 s42, s41, 14
    s_add_u32 s42, s42, s29
    s_lshl_b32 s28, s15, 17
    s_add_u32 s28, s28, s42
    """)
    stamp(a, 60)
    a(f"""
    s_mov_b32 s46, {512*1024}
    s_mov_b32 s47, 0x00020000
    s_mov_b32 s50, {1376*1024}
    s_mov_b32 s51, 0x00020000
    s_lshl_b32 s52, s2, 3
    s_add_u32 s52, s52, s3
    s_lshr_b32 s53, s52, 4
    s_and_b32 s54, s52, 15
    s_mul_i32 s55, s54, 118
    s_add_u32 s55, s55, s53
    s_lshl_b32 s55, s55, 10
    s_add_u32 s55, s55, {WS_WT}
    v_lshlrev_b32 v6, 13, v4
    v_lshl_add_u32 v6, v3, 1, v6
    s_lshl_b32 s54, s54, 6
    v_add_u32 v6, s54, v6
    s_cmp_ge_u32 s52, 1888
    s_cbranch_scc1 K1_wtd
    s_cmp_ge_u32 s53, 32
    s_cbranch_scc1 K1_wtb
    s_lshl_b32 s54, s53, 14
    s_add_u32 s56, s54, 4096
    """)
    def wt_loads(srd):
        for i in range(8):
            so = "s54" if i < 4 else "s56"
            a(f"buffer_load_ushort v{48+i}, v6, {srd}, {so} offen offset:{(i&3)*1024}")
    wt_loads("s[44:47]")
    a("s_branch K1_wtd")
    a.label("K1_wtb")
    a("""
    s_sub_u32 s54, s53, 32
    s_lshl_b32 s54, s54, 14
    s_add_u32 s56, s54, 4096
    """)
    wt_loads("s[48:51]")
    a.label("K1_wtd")
    vm0 = VM()
    for i in range(16):
        a(f"""
        v_xor_b32 v6, {i}, v2
        v_lshlrev_b32 v6, 4, v6
        s_add_u32 s30, s42, {i*1024}
        s_mov_b32 m0, s30
        s_add_u32 s31, s28, {i*1024}
        buffer_load_dwordx4 v6, s[16:19], s31 offen lds
        """)
        vm0.add("x")
    a("""
    v_lshrrev_b32 v6, 4, v2
    v_and_b32 v7, 15, v2
    v_lshlrev_b32 v8, 2, v6
    v_xor_b32 v7, v7, v8
    v_mul_u32_u24 v9, 3072, v6
    v_lshl_add_u32 v9, v7, 4, v9
    v_mul_u32_u24 v10, 2752, v6
    v_and_b32 v11, 8, v7
    v_cmp_ne_u32 vcc, 0, v11
    v_and_b32 v11, 7, v7
    v_xor_b32 v12, 2, v11
    v_mov_b32 v13, s8
    v_mov_b32 v14, s9
    v_mov_b32 v15, s10
    v_cndmask_b32 v11, v11, v12, vcc
    v_mov_b32 v12, s11
    v_cndmask_b32 v13, v13, v15, vcc
    v_cndmask_b32 v14, v14, v12, vcc
    v_lshl_add_u32 v10, v11, 4, v10
    v_add_co_u32 v10, vcc, v13, v10
    s_nop 1
    v_addc_co_u32 v11, vcc, 0, v14, vcc
    v_lshrrev_b32 v12, 2, v2
    v_mul_u32_u24 v12, 2752, v12
    v_and_b32 v13, 1, v2
    v_lshl_add_u32 v12, v13, 4, v12
    v_and_b32 v13, 2, v2
    v_cmp_ne_u32 vcc, 0, v13
    v_mov_b32 v13, s8
    v_mov_b32 v14, s9
    v_mov_b32 v15, s10
    v_mov_b32 v32, s11
    v_cndmask_b32 v13, v13, v15, vcc
    v_cndmask_b32 v14, v14, v32, vcc
    s_nop 1
    v_add_co_u32 v12, vcc, v13, v12
    s_nop 1
    v_addc_co_u32 v13, vcc, 0, v14, vcc
    s_lshl_b32 s33, s3, 12
    s_lshl_b32 s34, s3, 4
    s_cmp_ge_u32 s14, 6
    s_cbranch_scc1 K1_ffn
    s_cmp_ge_u32 s14, 4
    s_cbranch_scc1 K1_v
    """)
    st0 = _st[0]
    def path(kind):
        P = {"qk": "K1q", "v": "K1v", "ffn": "K1f"}[kind]
        vm = VM(); vm.ops = list(vm0.ops)
        _st[0] = st0
        def stage_load(t):
            g, kq = t >> 2, t & 3
            buf = BUFS[t % 4]
            if kind != "ffn":
                a(f"""
                s_mul_i32 s30, s34, 3072
                s_lshl_b32 s31, s14, 9
                s_add_u32 s30, s30, s31
                s_add_u32 s30, s30, {kq*128*3072 + g*256}
                """)
                for i in range(4):
                    a(f"""
                    s_add_u32 s31, s33, {buf + i*1024}
                    s_mov_b32 m0, s31
                    s_add_u32 s32, s30, {i*4*3072}
                    buffer_load_dwordx4 v9, s[36:39], s32 offen lds
                    """)
            else:
                a(f"""
                s_mul_i32 s30, s34, 2752
                s_sub_u32 s31, s14, 6
                s_lshl_b32 s31, s31, 8
                s_add_u32 s30, s30, s31
                s_add_u32 s30, s30, {kq*128*2752 + g*128}
                """)
                for i in range(4):
                    a(f"""
                    s_add_u32 s31, s33, {buf + i*1024}
                    s_mov_b32 m0, s31
                    v_add_co_u32 v14, vcc, s30, v10
                    s_add_u32 s30, s30, {4*2752}
                    s_nop 0
                    v_addc_co_u32 v15, vcc, 0, v11, vcc
                    global_load_lds_dwordx4 v[14:15], off
                    """)
            vm.add(f"w{t}", 4)
        def single_load():
            buf = BUFS[8 % 4]
            a(f"""
            s_mul_i32 s30, s3, {64*2752}
            s_sub_u32 s31, s14, 6
            s_lshl_b32 s31, s31, 5
            s_add_u32 s30, s30, s31
            s_add_u32 s30, s30, {80*32}
            """)
            for i in range(4):
                a(f"""
                s_add_u32 s31, s33, {buf + i*1024}
                s_mov_b32 m0, s31
                v_add_co_u32 v14, vcc, s30, v12
                s_add_u32 s30, s30, {16*2752}
                s_nop 0
                v_addc_co_u32 v15, vcc, 0, v13, vcc
                global_load_lds_dwordx4 v[14:15], off
                """)
            vm.add("w8", 4)
        stage_load(0)
        a("""
        v_and_b32 v6, 15, v3
        v_lshlrev_b32 v7, 10, v3
        v_add_u32 v7, s29, v7
        """)
        for b in range(8):
            a(f"""
            v_add_u32 v8, {2*b}, v4
            v_xor_b32 v8, v8, v6
            v_lshl_add_u32 v{16+b}, v8, 4, v7
            """)
        vm.wait(a, "x")
        a(f"""
        s_cmp_ge_u32 s52, 1888
        s_cbranch_scc1 {P}_wts
        v_lshlrev_b32 v6, 4, v2
        v_lshl_or_b32 v56, v49, 16, v48
        v_lshl_or_b32 v57, v51, 16, v50
        v_lshl_or_b32 v58, v53, 16, v52
        v_lshl_or_b32 v59, v55, 16, v54
        buffer_store_dwordx4 v[56:59], v6, s[20:23], s55 offen
        """)
        a.label(f"{P}_wts")
        a("s_barrier")
        stamp(a, 60)
        for j in range(32):
            a(f"ds_read_b128 {vr(XA+4*j,4)}, v{16+(j&7)} offset:{256*(j>>3)}")
            if j % 8 == 7:
                a("s_waitcnt lgkmcnt(0)")
        a("s_barrier")
        for t in (1, 2, 3):
            stage_load(t)
        stamp(a, 60)
        a("""
        v_mov_b32 v20, 0x3f803f80
        v_mov_b32 v21, 0
        v_mov_b32 v22, 0
        v_mov_b32 v25, 0x00003f80
        v_mov_b32 v26, 0x3f800000
        """)
        for j in range(0, 128, 2):
            a(f"v_dot2_f32_bf16 v21, v{XA+j}, v20, v21")
            a(f"v_dot2_f32_bf16 v22, v{XA+j+1}, v20, v22")
        a(f"""
        s_nop 3
        v_add_f32 v21, v21, v22
        v_mov_b32 v22, v21
        s_nop 1
        v_permlane32_swap_b32 v21, v22
        s_nop 1
        v_add_f32 v21, v21, v22
        v_mul_f32 v21, {f32(1.0/512)}, v21
        v_cvt_pk_bf16_f32 v22, v21, v21
        v_and_b32 v22, 0xffff0000, v22
        v_sub_f32 v23, v21, v22
        v_sub_f32 v22, 0, v22
        v_mov_b32 v24, 0
        v_mov_b32 v27, 0
        """)
        for j0 in range(0, 128, 4):
            for q in range(4):
                a(f"v_dot2_f32_bf16 v{28+2*q}, v{XA+j0+q}, v25, v22")
                a(f"v_dot2_f32_bf16 v{29+2*q}, v{XA+j0+q}, v26, v22")
            for q in range(4):
                a(f"v_cvt_pk_bf16_f32 v{XA+j0+q}, v{28+2*q}, v{29+2*q}")
            for q in range(4):
                acc = 24 if q % 2 == 0 else 27
                a(f"v_dot2_f32_bf16 v{acc}, v{XA+j0+q}, v{XA+j0+q}, v{acc}")
        a(f"""
        s_nop 3
        v_add_f32 v24, v24, v27
        v_mov_b32 v27, v24
        s_nop 1
        v_permlane32_swap_b32 v24, v27
        s_nop 1
        v_add_f32 v24, v24, v27
        v_mul_f32 v24, {f32(1.0/512)}, v24
        v_fma_f32 v24, -v23, v23, v24
        v_max_f32 v24, 0, v24
        v_cvt_pk_bf16_f32 v24, v24, v24
        v_and_b32 v24, 0xffff0000, v24
        v_add_f32 v24, {f32(1e-5)}, v24
        v_cvt_pk_bf16_f32 v24, v24, v24
        v_and_b32 v24, 0xffff0000, v24
        v_sqrt_f32 v24, v24
        s_nop 0
        v_cvt_pk_bf16_f32 v24, v24, v24
        v_and_b32 v24, 0xffff0000, v24
        v_rcp_f32 v24, v24
        """)
        if kind == "v":
            a(f"""
            s_lshl_b32 s30, s3, 7
            s_add_u32 s30, s30, {STATS}
            v_lshl_add_u32 v25, v3, 2, s30
            ds_write_b32 v25, v24
            v_lshl_add_u32 v25, v4, 4, s30
            """)
        a("""
        v_lshlrev_b32 v26, 3, v4
        v_and_b32 v27, 15, v2
        v_lshrrev_b32 v27, 2, v27
        v_add_u32 v26, v26, v27
        v_and_b32 v27, 3, v27
        v_lshrrev_b32 v28, 4, v2
        v_and_b32 v28, 1, v28
        v_and_b32 v29, 3, v2
        v_lshlrev_b32 v29, 3, v29
        v_lshl_add_u32 v29, v26, 8, v29
        s_lshl_b32 s43, s41, 1
        """)
        for jj in range(2):
            a(f"s_add_u32 s30, s43, {jj}")
            if kind != "ffn":
                a(f"""
                v_xor_b32 v30, s30, v27
                v_lshl_add_u32 v30, v30, 6, v29
                v_lshl_add_u32 v{16+jj}, v28, 5, v30
                """)
            else:
                a(f"""
                s_xor_b32 s31, s30, 1
                s_add_u32 s31, s31, 4
                v_cmp_ne_u32 vcc, 0, v28
                v_mov_b32 v30, s30
                v_mov_b32 v31, s31
                s_nop 0
                v_cndmask_b32 v30, v30, v31, vcc
                v_lshrrev_b32 v31, 1, v30
                v_xor_b32 v31, v31, v27
                v_and_b32 v30, 1, v30
                v_lshl_add_u32 v31, v31, 6, v29
                v_lshl_add_u32 v{16+jj}, v30, 5, v31
                """)
        if kind == "ffn":
            a("""
            v_lshlrev_b32 v20, 6, v26
            v_lshl_add_u32 v20, v28, 5, v20
            v_and_b32 v30, 3, v2
            v_lshl_add_u32 v20, v30, 3, v20
            """)
        if kind == "v":
            a("""
            v_lshlrev_b32 v21, 12, v3
            v_lshl_add_u32 v21, v4, 4, v21
            s_lshl_b32 s30, s26, 1
            v_add_u32 v21, s30, v21
            """)
        else:
            a("""
            v_lshlrev_b32 v21, 5, v5
            v_lshl_add_u32 v21, v4, 4, v21
            """)
        stamp(a, 60)

        def pack_store(A, n4, soff):
            a(f"""
            s_nop 1
            v_permlane32_swap_b32 v{A}, v{A+2}
            v_permlane32_swap_b32 v{A+1}, v{A+3}
            buffer_store_dwordx4 {vr(A,4)}, v21, s[20:23], {soff} offen
            """)
            vm.add("st", 1)

        def epilogue(units, first_unit_expr):
            a("s_nop 15")
            a(first_unit_expr)
            if kind == "qk":
                a(f"""
                s_cmp_lt_u32 s14, 2
                s_cselect_b32 s31, {f32(QSCALE)}, 1.0
                v_mul_f32 v32, s31, v24
                s_lshl_b32 s30, s30, 17
                """)
                for j in range(units):
                    A = ACC + 16 * j
                    for r in range(16):
                        a(f"v_mul_f32 v{A+r}, v32, v{A+r}")
                    for r in range(8):
                        a(f"v_cvt_pk_bf16_f32 v{A+r}, v{A+2*r}, v{A+2*r+1}")
                    a(f"s_add_u32 s31, s30, {j*131072}")
                    a(f"s_add_u32 s32, s30, {j*131072 + 65536}")
                    pack_store(A, 1, "s31")
                    pack_store(A + 4, 1, "s32")
            elif kind == "v":
                a(f"""
                ds_read_b128 v[40:43], v25
                ds_read_b128 v[44:47], v25 offset:32
                ds_read_b128 v[48:51], v25 offset:64
                ds_read_b128 v[52:55], v25 offset:96
                s_lshl_b32 s30, s30, 17
                s_add_u32 s30, s30, {WS_VT}
                s_waitcnt lgkmcnt(0)
                """)
                for j in range(units):
                    A = ACC + 16 * j
                    for r in range(16):
                        a(f"v_mul_f32 v{A+r}, v{40+r}, v{A+r}")
                    for r in range(8):
                        a(f"v_cvt_pk_bf16_f32 v{A+r}, v{A+2*r}, v{A+2*r+1}")
                    a(f"""
                    s_add_u32 s31, s30, {j*131072}
                    buffer_store_dwordx4 {vr(A,4)}, v21, s[20:23], s31 offen
                    buffer_store_dwordx4 {vr(A+4,4)}, v21, s[20:23], s31 offen offset:32
                    """)
                    vm.add("st", 2)
            else:
                a(f"""
                s_lshl_b32 s30, s30, 16
                s_add_u32 s30, s30, {WS_A + 32*65536}
                v_mul_f32 v32, {f32(-LOG2E)}, v24
                v_mul_f32 v33, v24, v24
                """)
                for j in range(units):
                    A = ACC + 16 * j
                    T = FR
                    for r in range(8):
                        a(f"v_mul_f32 v{T+r}, v32, v{A+r}")
                    for r in range(8):
                        a(f"v_exp_f32 v{T+r}, v{T+r}")
                    for r in range(8):
                        a(f"v_mul_f32 v{A+r}, v{A+r}, v{A+8+r}")
                    for r in range(8):
                        a(f"v_add_f32 v{T+r}, 1.0, v{T+r}")
                    for r in range(8):
                        a(f"v_rcp_f32 v{T+r}, v{T+r}")
                    for r in range(8):
                        a(f"v_mul_f32 v{A+r}, v33, v{A+r}")
                    for r in range(8):
                        a(f"v_mul_f32 v{A+r}, v{T+r}, v{A+r}")
                    for r in range(4):
                        a(f"v_cvt_pk_bf16_f32 v{A+r}, v{A+2*r}, v{A+2*r+1}")
                    a(f"s_add_u32 s31, s30, {j*65536}")
                    pack_store(A, 1, "s31")
            a("s_nop 1")

        for t in range(8):
            g, kq = t >> 2, t & 3
            vm.wait(a, f"w{t}")
            a("s_waitcnt lgkmcnt(0)")
            a("s_barrier")
            if t >= 1:
                if t + 3 < 8:
                    stage_load(t + 3)
                elif t + 3 == 8 and kind == "ffn":
                    a("s_cmp_ge_u32 s14, 12")
                    a(f"s_cbranch_scc1 {P}_nos")
                    keep = list(vm.ops)
                    single_load()
                    a.label(f"{P}_nos")
                    vm.ops = keep
            buf = BUFS[t % 4]
            for jj in range(2):
                a(f"v_add_u32 v{34+jj}, {buf}, v{16+jj}")
            seq = [(s, jj) for s in range(8) for jj in range(2)]
            def rd(i):
                s, jj = seq[i]
                f = FR + 4 * (i % NFR)
                a(f"ds_read_b64_tr_b16 {vr(f,2)}, v{34+jj} offset:{4096*s}")
                a(f"ds_read_b64_tr_b16 {vr(f+2,2)}, v{34+jj} offset:{4096*s+1024}")
            for i in range(NFR - 1):
                rd(i)
            for i in range(16):
                s, jj = seq[i]
                if i + NFR - 1 < 16:
                    rd(i + NFR - 1)
                a(f"s_waitcnt lgkmcnt({2*min(NFR-1, 15-i)})")
                f = FR + 4 * (i % NFR)
                A = ACC + 16 * jj
                c = "0" if (kq == 0 and s == 0) else vr(A, 16)
                w, x = vr(f, 4), vr(XA + 4 * (kq * 8 + s), 4)
                if kind == "v":
                    a(f"v_mfma_f32_32x32x16_bf16 {vr(A,16)}, {x}, {w}, {c}")
                else:
                    a(f"v_mfma_f32_32x32x16_bf16 {vr(A,16)}, {w}, {x}, {c}")
            if kq == 3:
                sub = {"qk": 0, "v": 4, "ffn": 6}[kind]
                fu = f"s_sub_u32 s30, s14, {sub}\ns_lshl_b32 s30, s30, 3\ns_add_u32 s30, s30, {g*4}\ns_add_u32 s30, s30, s43"
                epilogue(2, fu)
        if kind == "ffn":
            a("s_cmp_ge_u32 s14, 12")
            a(f"s_cbranch_scc1 K1_done")
            a("s_waitcnt vmcnt(0) lgkmcnt(0)")
            a("s_barrier")
            a("s_cmp_lg_u32 s41, 0")
            a(f"s_cbranch_scc1 K1_done")
            a(f"v_add_u32 v34, {BUFS[0]}, v20")
            def rd(i):
                f = FR + 4 * (i % NFR)
                a(f"ds_read_b64_tr_b16 {vr(f,2)}, v34 offset:{1024*i}")
                a(f"ds_read_b64_tr_b16 {vr(f+2,2)}, v34 offset:{1024*i+256}")
            for i in range(NFR - 1):
                rd(i)
            for i in range(32):
                if i + NFR - 1 < 32:
                    rd(i + NFR - 1)
                a(f"s_waitcnt lgkmcnt({2*min(NFR-1, 31-i)})")
                f = FR + 4 * (i % NFR)
                c = "0" if i == 0 else vr(ACC, 16)
                a(f"v_mfma_f32_32x32x16_bf16 {vr(ACC,16)}, {vr(f,4)}, {vr(XA+4*i,4)}, {c}")
            epilogue(1, "s_add_u32 s30, s14, 74")
        a("s_branch K1_done")

    path("qk")
    a.label("K1_v")
    path("v")
    a.label("K1_ffn")
    path("ffn")
    a.label("K1_done")
    stamp(a, 60)
    stamp_flush(a, 60, tid=STID)
    a.label("K1_end")
    a("s_endpgm")

def gen_k2(a):
    kernel_head(a, "k2_kernel")
    VROW = 4112
    VBASE = 65536
    a(f"""
    s_cmp_ge_u32 s2, 256
    s_cbranch_scc1 K2_end
    s_load_dwordx2 s[4:5], s[0:1], 72
    v_lshrrev_b32 v1, 6, v0
    v_and_b32 v2, 63, v0
    s_nop 0
    v_readfirstlane_b32 s3, v1
    s_and_b32 s14, s2, 7
    s_lshl_b32 s14, s14, 2
    s_lshr_b32 s15, s2, 3
    s_and_b32 s15, s15, 3
    s_add_u32 s14, s14, s15
    s_lshr_b32 s15, s2, 5
    s_lshl_b32 s16, s15, 8
    s_lshl_b32 s17, s3, 5
    s_add_u32 s16, s16, s17
    s_lshl_b32 s17, s14, 16
    v_and_b32 v3, 31, v2
    v_lshrrev_b32 v4, 5, v2
    v_add_u32 v5, s16, v3
    v_lshlrev_b32 v6, 5, v5
    v_lshl_add_u32 v6, v4, 4, v6
    v_lshlrev_b32 v7, 4, v2
    s_waitcnt lgkmcnt(0)
    s_mov_b32 s8, s4
    s_mov_b32 s9, s5
    s_mov_b32 s10, {WS_SIZE}
    s_mov_b32 s11, 0x00020000
    buffer_load_dwordx4 v[8:11], v6, s[8:11], s17 offen
    s_lshl_b32 s18, s3, 13
    s_add_u32 s19, s17, s18
    s_add_u32 s19, s19, {WS_K}
    """)
    stamp(a, 60)
    a(f"""
    s_lshl_b32 s24, s3, 11
    s_add_u32 s25, s17, s24
    s_add_u32 s25, s25, {WS_K}
    """)
    for p in range(4):
        for i in range(2):
            a(f"""
            s_add_u32 s20, s24, {p*16384 + i*1024}
            s_mov_b32 m0, s20
            s_add_u32 s21, s25, {p*16384 + i*1024}
            buffer_load_dwordx4 v7, s[8:11], s21 offen lds
            """)
    a(f"""
    s_add_u32 s19, s17, s18
    s_add_u32 s19, s19, {WS_VT}
    s_lshl_b32 s22, s3, 1
    s_mul_i32 s22, s22, {VROW}
    s_add_u32 s22, s22, {VBASE}
    """)
    for i in range(8):
        a(f"""
        s_add_u32 s20, s22, {(i>>2)*VROW + (i&3)*1024}
        s_mov_b32 m0, s20
        s_add_u32 s21, s19, {i*1024}
        buffer_load_dwordx4 v7, s[8:11], s21 offen lds
        """)
    X = 64
    Y = 128
    FX = 16
    FY = 32
    a(f"""
    v_lshlrev_b32 v12, 5, v3
    v_lshl_add_u32 v12, v4, 4, v12
    v_mov_b32 v13, 0xff7fffff
    v_mov_b32 v14, 0xff7fffff
    """)
    for r in range(64):
        a(f"v_mov_b32 v{Y+r}, 0xff7fffff")
    a("""
    s_waitcnt vmcnt(14)
    s_barrier
    """)
    stamp(a, 60)
    def maxes(S):
        for r in range(0, 16, 4):
            a(f"v_max3_f32 v13, v13, v{S+r}, v{S+r+1}")
            a(f"v_max3_f32 v14, v14, v{S+r+2}, v{S+r+3}")
    for k in range(4):
        a(f"ds_read_b128 {vr(FX+4*k,4)}, v12 offset:{1024*k}")
    for it in range(8):
        for k in range(4):
            a(f"ds_read_b128 {vr(FY+4*k,4)}, v12 offset:{1024*(8*it+4+k)}")
        a("s_waitcnt lgkmcnt(4)")
        for k in range(4):
            a(f"v_mfma_f32_32x32x16_bf16 {vr(X+16*k,16)}, {vr(FX+4*k,4)}, v[8:11], 0")
            maxes(Y + 16 * k)
        if it < 7:
            if it % 2 == 1:
                a(f"s_waitcnt vmcnt({14 - (it+1)})")
                a("s_barrier")
            for k in range(4):
                a(f"ds_read_b128 {vr(FX+4*k,4)}, v12 offset:{1024*(8*it+8+k)}")
            a("s_waitcnt lgkmcnt(4)")
        else:
            a("s_waitcnt lgkmcnt(0)")
        for k in range(4):
            a(f"v_mfma_f32_32x32x16_bf16 {vr(Y+16*k,16)}, {vr(FY+4*k,4)}, v[8:11], 0")
            maxes(X + 16 * k)
    a("s_nop 15")
    for k in range(4):
        maxes(Y + 16 * k)
    stamp(a, 60)
    CM = 48
    SA = 64
    SB = 80
    O = 96
    KB = [16, 20]
    VB = [[24, 28], [32, 36]]
    P = [40, 44]
    a(f"""
    v_max_f32 v13, v13, v14
    v_mov_b32 v14, v13
    s_nop 1
    v_permlane32_swap_b32 v13, v14
    s_nop 1
    v_max_f32 v13, v13, v14
    v_sub_f32 v13, 0, v13
    """)
    for r in range(16):
        a(f"v_mov_b32 v{CM+r}, v13")
        a(f"v_mov_b32 v{O+r}, 0")
    a(f"""
    s_waitcnt lgkmcnt(0)
    v_cmp_eq_u32 vcc, 16, v3
    v_mov_b32 v15, 0x3f803f80
    s_nop 1
    v_cndmask_b32 v15, 0, v15, vcc
    """)
    for r in range(16):
        a(f"v_mov_b32 v{24+r}, v15")
    a(f"""
    v_lshlrev_b32 v12, 5, v3
    v_lshl_add_u32 v12, v4, 4, v12
    s_mov_b32 s24, {VROW}
    v_mul_lo_u32 v15, v3, s24
    v_lshl_add_u32 v15, v4, 4, v15
    v_add_u32 v15, {VBASE}, v15
    s_mov_b32 s26, 0x0000ffff
    s_mov_b32 s27, 0x0000ffff
    s_waitcnt vmcnt(0)
    s_barrier
    ds_read_b128 {vr(KB[0],4)}, v12
    ds_read_b128 {vr(KB[1],4)}, v12 offset:1024
    s_mov_b64 exec, s[26:27]
    ds_read_b128 {vr(VB[0][0],4)}, v15
    ds_read_b128 {vr(VB[0][1],4)}, v15 offset:32
    s_mov_b64 exec, -1
    s_waitcnt lgkmcnt(0)
    v_mfma_f32_32x32x16_bf16 {vr(SA,16)}, {vr(KB[0],4)}, v[8:11], {vr(CM,16)}
    s_mov_b32 s23, 0
    s_and_b32 s36, s3, 1
    s_lshr_b32 s37, s3, 1
    s_and_b32 s37, s37, 1
    s_lshr_b32 s38, s3, 2
    s_lshl_b32 s39, s14, 1
    s_add_u32 s39, s39, s36
    s_lshl_b32 s40, s15, 1
    s_add_u32 s40, s40, s37
    s_add_u32 s41, s38, 32
    s_lshl_b32 s42, s41, 16
    s_lshl_b32 s43, s39, 10
    s_add_u32 s42, s42, s43
    s_add_u32 s42, s42, {WS_A}
    s_mul_i32 s43, s40, 118
    s_add_u32 s43, s43, s41
    s_lshl_b32 s43, s43, 10
    s_add_u32 s43, s43, {WS_WT}
    """)
    a("""
    v_lshlrev_b32 v160, 5, v3
    v_lshl_add_u32 v160, v4, 4, v160
    """)
    GA = 112
    GR = 128
    def gload(i):
        f = GR + 8 * (i % 4)
        a(f"""
        buffer_load_dwordx4 {vr(f,4)}, v160, s[8:11], s42 offen
        buffer_load_dwordx4 {vr(f+4,4)}, v7, s[8:11], s43 offen
        s_add_u32 s42, s42, 131072
        s_add_u32 s43, s43, 2048
        """)
    gload(0)
    gload(1)
    S = [SA, SB]
    def tile(t, g, gl, first):
        u = t & 1
        cur, nxt = S[u], S[1 - u]
        a(f"""
        s_waitcnt lgkmcnt(0)
        ds_read_b128 {vr(KB[u],4)}, v12 offset:{1024*(t+2)}
        s_mov_b64 exec, s[26:27]
        ds_read_b128 {vr(VB[1-u][0],4)}, v15 offset:{64*(t+1)}
        ds_read_b128 {vr(VB[1-u][1],4)}, v15 offset:{64*(t+1)+32}
        s_mov_b64 exec, -1
        v_mfma_f32_32x32x16_bf16 {vr(nxt,16)}, {vr(KB[1-u],4)}, v[8:11], {vr(CM,16)}
        """)
        if gl:
            gload(t + 2)
        for r in range(8):
            a(f"v_exp_f32 v{cur+r}, v{cur+r}")
        for r in range(4):
            a(f"v_cvt_pk_bf16_f32 v{P[0]+r}, v{cur+2*r}, v{cur+2*r+1}")
        for r in range(8, 16):
            a(f"v_exp_f32 v{cur+r}, v{cur+r}")
        a(f"v_mfma_f32_32x32x16_bf16 {vr(O,16)}, {vr(VB[u][0],4)}, {vr(P[0],4)}, {vr(O,16)}")
        for r in range(4):
            a(f"v_cvt_pk_bf16_f32 v{P[1]+r}, v{cur+8+2*r}, v{cur+8+2*r+1}")
        if g is not None:
            f = GR + 8 * (t % 4)
            a(f"s_waitcnt vmcnt({g})")
            c = "0" if first else vr(GA, 16)
            a(f"v_mfma_f32_32x32x16_bf16 {vr(GA,16)}, {vr(f+4,4)}, {vr(f,4)}, {c}")
        else:
            a("s_nop 1")
        a(f"v_mfma_f32_32x32x16_bf16 {vr(O,16)}, {vr(VB[u][1],4)}, {vr(P[1],4)}, {vr(O,16)}")
    def advance():
        a("""
        v_add_u32 v12, 4096, v12
        v_add_u32 v15, 256, v15
        """)
    stamp(a, 60)
    for t in range(4):
        tile(t, 4, True, t == 0)
    advance()
    a.label("K2_p2a")
    for t in range(4):
        tile(t, 4, True, False)
    advance()
    a("""
    s_add_u32 s23, s23, 1
    s_cmp_lt_u32 s23, 9
    s_cbranch_scc1 K2_p2a
    """)
    tile(0, 4, True, False)
    tile(1, 2, False, False)
    tile(2, 0, False, False)
    tile(3, None, False, False)
    advance()
    a("s_mov_b32 s23, 0")
    a.label("K2_p2b")
    for t in range(4):
        tile(t, None, False, False)
    advance()
    a(f"""
    s_add_u32 s23, s23, 1
    s_cmp_lt_u32 s23, 5
    s_cbranch_scc1 K2_p2b
    s_nop 15
    s_waitcnt lgkmcnt(0)
    s_barrier
    s_and_b32 s44, s3, 3
    s_lshl_b32 s44, s44, 12
    v_add_u32 v16, s44, v7
    s_cmp_eq_u32 s38, 0
    s_cbranch_scc1 K2_red
    ds_write_b128 v16, {vr(GA,4)}
    ds_write_b128 v16, {vr(GA+4,4)} offset:1024
    ds_write_b128 v16, {vr(GA+8,4)} offset:2048
    ds_write_b128 v16, {vr(GA+12,4)} offset:3072
    s_waitcnt lgkmcnt(0)
    s_barrier
    s_branch K2_fin
    """)
    a.label("K2_red")
    a(f"""
    s_barrier
    ds_read_b128 v[20:23], v16
    ds_read_b128 v[24:27], v16 offset:1024
    ds_read_b128 v[28:31], v16 offset:2048
    ds_read_b128 v[32:35], v16 offset:3072
    s_lshl_b32 s44, s39, 4
    s_add_u32 s44, s44, s40
    s_lshl_b32 s44, s44, 12
    s_add_u32 s44, s44, {WS_P}
    s_waitcnt lgkmcnt(0)
    """)
    for r in range(16):
        a(f"v_add_f32 v{GA+r}, v{20+r}, v{GA+r}")
    for q in range(4):
        a(f"buffer_store_dwordx4 {vr(GA+4*q,4)}, v7, s[8:11], s44 offen offset:{1024*q}")
    a.label("K2_fin")
    a(f"""
    v_mov_b32 v13, v{O+8}
    v_mov_b32 v14, v{O+8}
    s_nop 1
    v_permlane32_swap_b32 v13, v14
    s_nop 1
    v_rcp_f32 v13, v13
    s_nop 0
    """)
    for r in range(8):
        a(f"v_mul_f32 v{O+r}, v13, v{O+r}")
    for r in range(4):
        a(f"v_cvt_pk_bf16_f32 v{40+r}, v{O+2*r}, v{O+2*r+1}")
    a(f"""
    v_lshlrev_b32 v6, 5, v5
    v_lshl_add_u32 v6, v4, 3, v6
    s_add_u32 s20, s17, {WS_A}
    buffer_store_dwordx2 v[40:41], v6, s[8:11], s20 offen
    buffer_store_dwordx2 v[42:43], v6, s[8:11], s20 offen offset:16
    """)
    stamp(a, 60)
    stamp_flush(a, 60, tid=STID)
    a.label("K2_end")
    a("s_endpgm")

def gen_k3(a):
    kernel_head(a, "k3_kernel")
    ACC = 16
    PB = 32
    XB = 48
    RING = 64
    a(f"""
    s_cmp_ge_u32 s2, 256
    s_cbranch_scc1 K3_end
    s_load_dwordx2 s[4:5], s[0:1], 0
    s_load_dwordx2 s[10:11], s[0:1], 56
    s_load_dwordx2 s[12:13], s[0:1], 72
    v_lshrrev_b32 v1, 6, v0
    v_and_b32 v2, 63, v0
    s_nop 0
    v_readfirstlane_b32 s3, v1
    s_and_b32 s14, s2, 7
    s_lshl_b32 s14, s14, 2
    s_lshr_b32 s15, s2, 3
    s_and_b32 s15, s15, 3
    s_add_u32 s14, s14, s15
    s_lshr_b32 s15, s2, 5
    s_and_b32 s36, s3, 1
    s_lshr_b32 s37, s3, 1
    s_lshl_b32 s39, s14, 1
    s_add_u32 s39, s39, s36
    s_lshl_b32 s40, s15, 1
    s_add_u32 s40, s40, s37
    v_and_b32 v3, 31, v2
    v_lshrrev_b32 v4, 5, v2
    s_lshl_b32 s38, s39, 5
    v_add_u32 v5, s38, v3
    v_lshlrev_b32 v7, 4, v2
    v_lshlrev_b32 v8, 5, v3
    v_lshl_add_u32 v8, v4, 4, v8
    s_waitcnt lgkmcnt(0)
    s_mov_b32 s16, s4
    s_mov_b32 s17, s5
    s_mov_b32 s18, 0x200000
    s_mov_b32 s19, 0x00020000
    s_mov_b32 s28, s10
    s_mov_b32 s29, s11
    s_mov_b32 s30, 0x200000
    s_mov_b32 s31, 0x00020000
    s_mov_b32 s32, s12
    s_mov_b32 s33, s13
    s_mov_b32 s34, {WS_SIZE}
    s_mov_b32 s35, 0x00020000
    s_lshl_b32 s42, s39, 10
    s_add_u32 s42, s42, {WS_A}
    s_mul_i32 s43, s40, {118*1024}
    s_add_u32 s43, s43, {WS_WT}
    s_lshl_b32 s44, s39, 4
    s_add_u32 s44, s44, s40
    s_lshl_b32 s44, s44, 12
    s_add_u32 s44, s44, {WS_P}
    v_lshlrev_b32 v6, 10, v5
    v_lshl_add_u32 v6, v4, 4, v6
    s_lshl_b32 s45, s40, 6
    """)
    stamp(a, 60)
    def ld(i):
        f = RING + 8 * (i % 16)
        a(f"""
        buffer_load_dwordx4 {vr(f,4)}, v8, s[32:35], s42 offen
        buffer_load_dwordx4 {vr(f+4,4)}, v7, s[32:35], s43 offen
        s_add_u32 s42, s42, 65536
        s_add_u32 s43, s43, 1024
        """)
    for i in range(16):
        ld(i)
    for q in range(4):
        a(f"buffer_load_dwordx4 {vr(PB+4*q,4)}, v7, s[32:35], s44 offen offset:{1024*q}")
    a("buffer_load_dwordx4 v[48:51], v6, s[16:19], s45 offen")
    a("buffer_load_dwordx4 v[52:55], v6, s[16:19], s45 offen offset:32")
    for i in range(32):
        if i < 16:
            n = 2 * (15 - i) + 6 + 2 * i
        else:
            n = 2 * (31 - i)
        a(f"s_waitcnt vmcnt({n})")
        f = RING + 8 * (i % 16)
        c = "0" if i == 0 else vr(ACC, 16)
        a(f"v_mfma_f32_32x32x16_bf16 {vr(ACC,16)}, {vr(f+4,4)}, {vr(f,4)}, {c}")
        if i < 16:
            ld(i + 16)
    a("s_nop 15")
    for r in range(16):
        a(f"v_add_f32 v{ACC+r}, v{PB+r}, v{ACC+r}")
    for q in range(2):
        B = ACC + 8 * q
        a(f"""
        v_permlane32_swap_b32 v{B}, v{B+4}
        v_permlane32_swap_b32 v{B+1}, v{B+5}
        v_permlane32_swap_b32 v{B+2}, v{B+6}
        v_permlane32_swap_b32 v{B+3}, v{B+7}
        """)
    for q in range(2):
        B = ACC + 8 * q
        for r in range(4):
            a(f"""
            v_lshlrev_b32 v40, 16, v{XB+4*q+r}
            v_and_b32 v41, 0xffff0000, v{XB+4*q+r}
            v_add_f32 v{B+2*r}, v40, v{B+2*r}
            v_add_f32 v{B+2*r+1}, v41, v{B+2*r+1}
            v_cvt_pk_bf16_f32 v{56+4*q+r}, v{B+2*r}, v{B+2*r+1}
            """)
    a("""
    buffer_store_dwordx4 v[56:59], v6, s[28:31], s45 offen
    buffer_store_dwordx4 v[60:63], v6, s[28:31], s45 offen offset:32
    """)
    stamp(a, 60)
    stamp_flush(a, 60)
    a.label("K3_end")
    a("s_endpgm")

def main():
    a = Asm()
    a.raw("; @launch kernel=k1_kernel grid=(256,1,1) block=(512,1,1) lds=163840")
    a.raw("; @launch kernel=k2_kernel grid=(256,1,1) block=(512,1,1) lds=131584")
    a.raw("; @launch kernel=k3_kernel grid=(256,1,1) block=(256,1,1) lds=0")
    a.raw('.amdgcn_target "amdgcn-amd-amdhsa--gfx950"')
    a.raw(".text")
    gen_k1(a)
    gen_k2(a)
    gen_k3(a)
    a.raw('.section .rodata,"a"')
    a.raw(".p2align 6")
    a.raw(descriptor("k1_kernel", 256))
    a.raw(".p2align 6")
    a.raw(descriptor("k2_kernel", 192))
    a.raw(".p2align 6")
    a.raw(descriptor("k3_kernel", 192))
    open(OUT, "w").write(a.text())

main()
```

```python
import sys

OUT = "parallel_sum__mha_block__swiglu_ffn__prompt.s"

WS_Q = 0
WS_K = 2 << 20
WS_VT = 4 << 20
WS_A = 6 << 20
WS_WT = 14 << 20
WS_P = 16 << 20
WS_SIZE = 24 << 20

LOG2E = 1.4426950408889634
QSCALE = 0.25 * LOG2E

import struct
def f32(x):
    return "0x%08x" % struct.unpack("<I", struct.pack("<f", x))[0]

class Asm:
    def __init__(self):
        self.l = []
    def __call__(self, s):
        for line in s.strip("\n").split("\n"):
            self.l.append("    " + line.strip())
    def label(self, n):
        self.l.append(n + ":")
    def raw(self, s):
        self.l.append(s)
    def text(self):
        return "\n".join(self.l) + "\n"

STAMP = len(sys.argv) > 1 and sys.argv[1] == "stamp"
if STAMP:
    OUT = "stamped.s"
_st = [0]
STID = int(sys.argv[2]) if len(sys.argv) > 2 else 0
def stamp(a, sbase):
    if not STAMP:
        return
    i = _st[0]; _st[0] += 1
    if i == 0:
        a("s_memrealtime s[58:59]")
    a(f"s_memtime s[{sbase+2*i}:{sbase+2*i+1}]")
    a("s_waitcnt lgkmcnt(0)")
_cs = [0]
def cstamp(a, sbase, sreg, val):
    if not STAMP:
        return
    n = _cs[0]; _cs[0] += 1
    a(f"s_cmp_lg_u32 {sreg}, {val}")
    a(f"s_cbranch_scc1 CST_{n}")
    stamp(a, sbase)
    a.label(f"CST_{n}")

_kid = [0]
def stamp_flush(a, sbase, wg_s="s2", tid=0):
    if not STAMP:
        return
    n = _st[0]; _st[0] = 0
    kid = _kid[0]; _kid[0] += 1
    a(f"""
    s_memrealtime s[{sbase+2*n}:{sbase+2*n+1}]
    s_load_dwordx2 s[96:97], s[0:1], 72
    s_waitcnt lgkmcnt(0)
    s_mov_b32 s98, 0x4000000
    s_mov_b32 s99, 0x00020000
    s_lshl_b32 s93, {wg_s}, 8
    s_add_u32 s93, s93, {(32<<20) + kid*65536}
    v_cmp_eq_u32 vcc, {tid}, v0
    s_and_saveexec_b64 s[94:95], vcc
    s_cbranch_execz STR_{kid}
    v_mov_b32 v1, 0
    """)
    for i in range(n + 1):
        a(f"v_mov_b32 v2, s{sbase+2*i}")
        a(f"buffer_store_dword v2, v1, s[96:99], s93 offen offset:{4*i}")
    a(f"v_mov_b32 v2, s58")
    a(f"buffer_store_dword v2, v1, s[96:99], s93 offen offset:{4*(n+1)}")
    a(f"s_getreg_b32 s92, hwreg(HW_REG_XCC_ID)")
    a(f"v_mov_b32 v2, s92")
    a(f"v_add_u32 v2, 1, v2")
    a(f"buffer_store_dword v2, v1, s[96:99], s93 offen offset:{4*(n+2)}")
    a.label(f"STR_{kid}")
    a("s_mov_b64 exec, s[94:95]")

def vr(a, n):
    return f"v[{a}:{a+n-1}]"

def kernel_head(a, name):
    a.raw(f".globl {name}")
    a.raw(".p2align 8")
    a.raw(f".type {name},@function")
    a.label(name)

def descriptor(name, vgpr, sgpr=102):
    acc = (vgpr + 3) // 4 * 4
    return f""".amdhsa_kernel {name}
  .amdhsa_next_free_vgpr {vgpr}
  .amdhsa_next_free_sgpr {sgpr}
  .amdhsa_accum_offset {acc}
  .amdhsa_group_segment_fixed_size 0
  .amdhsa_kernarg_size 80
  .amdhsa_user_sgpr_count 2
  .amdhsa_user_sgpr_kernarg_segment_ptr 1
  .amdhsa_system_sgpr_workgroup_id_x 1
.end_amdhsa_kernel
"""

class VM:
    def __init__(self):
        self.ops = []
    def add(self, tag, n=1):
        self.ops += [tag] * n
    def wait(self, a, tag):
        last = max(i for i, t in enumerate(self.ops) if t == tag)
        n = len(self.ops) - 1 - last
        assert n <= 63
        a(f"s_waitcnt vmcnt({n})")

def gen_k1(a):
    kernel_head(a, "k1_kernel")
    XA = 128
    ACC = 64
    FR = 40
    NFR = 6
    BUFS = [131072, 0, 32768, 65536]
    EXC = 65536
    STATS = 98304
    a(f"""
    s_cmp_ge_u32 s2, 256
    s_cbranch_scc1 K1_end
    s_load_dwordx4 s[4:7], s[0:1], 0
    s_load_dwordx4 s[8:11], s[0:1], 32
    s_load_dwordx2 s[12:13], s[0:1], 72
    s_load_dwordx2 s[44:45], s[0:1], 16
    s_load_dwordx2 s[48:49], s[0:1], 48
    v_lshrrev_b32 v1, 6, v0
    v_and_b32 v2, 63, v0
    s_nop 0
    v_readfirstlane_b32 s3, v1
    s_and_b32 s14, s2, 1
    s_lshl_b32 s14, s14, 3
    s_lshr_b32 s15, s2, 5
    s_add_u32 s14, s14, s15
    s_lshr_b32 s15, s2, 1
    s_and_b32 s15, s15, 3
    s_lshl_b32 s15, s15, 2
    s_lshr_b32 s40, s2, 3
    s_and_b32 s40, s40, 3
    s_add_u32 s15, s15, s40
    s_and_b32 s40, s3, 3
    s_lshr_b32 s41, s3, 2
    s_lshl_b32 s26, s15, 7
    s_lshl_b32 s27, s40, 5
    s_add_u32 s26, s26, s27
    v_and_b32 v3, 31, v2
    v_lshrrev_b32 v4, 5, v2
    v_add_u32 v5, s26, v3
    s_waitcnt lgkmcnt(0)
    s_mov_b32 s16, s4
    s_mov_b32 s17, s5
    s_mov_b32 s18, 0x200000
    s_mov_b32 s19, 0x00020000
    s_mov_b32 s20, s12
    s_mov_b32 s21, s13
    s_mov_b32 s22, {WS_SIZE}
    s_mov_b32 s23, 0x00020000
    s_mov_b32 s36, s6
    s_mov_b32 s37, s7
    s_mov_b32 s38, {512*3072}
    s_mov_b32 s39, 0x00020000
    s_lshl_b32 s29, s40, 15
    s_lshl_b32 s42, s41, 14
    s_add_u32 s42, s42, s29
    s_lshl_b32 s28, s15, 17
    s_add_u32 s28, s28, s42
    """)
    stamp(a, 60)
    a(f"""
    s_mov_b32 s46, {512*1024}
    s_mov_b32 s47, 0x00020000
    s_mov_b32 s50, {1376*1024}
    s_mov_b32 s51, 0x00020000
    s_lshl_b32 s52, s2, 3
    s_add_u32 s52, s52, s3
    s_lshr_b32 s53, s52, 4
    s_and_b32 s54, s52, 15
    s_mul_i32 s55, s54, 118
    s_add_u32 s55, s55, s53
    s_lshl_b32 s55, s55, 10
    s_add_u32 s55, s55, {WS_WT}
    s_lshl_b32 s35, s54, 6
    """)
    vm0 = VM()
    for i in range(16):
        a(f"""
        v_xor_b32 v6, {i}, v2
        v_lshlrev_b32 v6, 4, v6
        s_add_u32 s30, s42, {i*1024}
        s_mov_b32 m0, s30
        s_add_u32 s31, s28, {i*1024}
        buffer_load_dwordx4 v6, s[16:19], s31 offen lds
        """)
        vm0.add("x")
    a("""
    v_lshrrev_b32 v6, 4, v2
    v_and_b32 v7, 15, v2
    v_lshlrev_b32 v8, 2, v6
    v_xor_b32 v7, v7, v8
    v_mul_u32_u24 v9, 3072, v6
    v_lshl_add_u32 v9, v7, 4, v9
    v_mul_u32_u24 v10, 2752, v6
    v_and_b32 v11, 8, v7
    v_cmp_ne_u32 vcc, 0, v11
    v_and_b32 v11, 7, v7
    v_xor_b32 v12, 2, v11
    v_mov_b32 v13, s8
    v_mov_b32 v14, s9
    v_mov_b32 v15, s10
    v_cndmask_b32 v11, v11, v12, vcc
    v_mov_b32 v12, s11
    v_cndmask_b32 v13, v13, v15, vcc
    v_cndmask_b32 v14, v14, v12, vcc
    v_lshl_add_u32 v10, v11, 4, v10
    v_add_co_u32 v10, vcc, v13, v10
    s_nop 1
    v_addc_co_u32 v11, vcc, 0, v14, vcc
    v_lshrrev_b32 v12, 2, v2
    v_mul_u32_u24 v12, 2752, v12
    v_and_b32 v13, 1, v2
    v_lshl_add_u32 v12, v13, 4, v12
    v_and_b32 v13, 2, v2
    v_cmp_ne_u32 vcc, 0, v13
    v_mov_b32 v13, s8
    v_mov_b32 v14, s9
    v_mov_b32 v15, s10
    v_mov_b32 v32, s11
    v_cndmask_b32 v13, v13, v15, vcc
    v_cndmask_b32 v14, v14, v32, vcc
    s_nop 1
    v_add_co_u32 v12, vcc, v13, v12
    s_nop 1
    v_addc_co_u32 v13, vcc, 0, v14, vcc
    s_lshl_b32 s33, s3, 12
    s_lshl_b32 s34, s3, 4
    s_cmp_ge_u32 s14, 6
    s_cbranch_scc1 K1_ffn
    s_cmp_ge_u32 s14, 4
    s_cbranch_scc1 K1_v
    """)
    st0 = _st[0]
    def path(kind):
        P = {"qk": "K1q", "v": "K1v", "ffn": "K1f"}[kind]
        vm = VM(); vm.ops = list(vm0.ops)
        _st[0] = st0
        def stage_load(t):
            g, kq = t >> 2, t & 3
            buf = BUFS[t % 4]
            if kind != "ffn":
                a(f"""
                s_mul_i32 s30, s34, 3072
                s_lshl_b32 s31, s14, 9
                s_add_u32 s30, s30, s31
                s_add_u32 s30, s30, {kq*128*3072 + g*256}
                """)
                for i in range(4):
                    a(f"""
                    s_add_u32 s31, s33, {buf + i*1024}
                    s_mov_b32 m0, s31
                    s_add_u32 s32, s30, {i*4*3072}
                    buffer_load_dwordx4 v9, s[36:39], s32 offen lds
                    """)
            else:
                a(f"""
                s_mul_i32 s30, s34, 2752
                s_sub_u32 s31, s14, 6
                s_lshl_b32 s31, s31, 8
                s_add_u32 s30, s30, s31
                s_add_u32 s30, s30, {kq*128*2752 + g*128}
                """)
                for i in range(4):
                    a(f"""
                    s_add_u32 s31, s33, {buf + i*1024}
                    s_mov_b32 m0, s31
                    v_add_co_u32 v14, vcc, s30, v10
                    s_add_u32 s30, s30, {4*2752}
                    s_nop 0
                    v_addc_co_u32 v15, vcc, 0, v11, vcc
                    global_load_lds_dwordx4 v[14:15], off
                    """)
            vm.add(f"w{t}", 4)
        def stage_pieces(t):
            g, kq = t >> 2, t & 3
            buf = BUFS[t % 4]
            out = []
            for i in range(4):
                def piece(i=i):
                    if kind != "ffn":
                        a(f"""
                        s_mul_i32 s56, s34, 3072
                        s_lshl_b32 s57, s14, 9
                        s_add_u32 s56, s56, s57
                        s_add_u32 s56, s56, {kq*128*3072 + g*256 + i*4*3072}
                        s_add_u32 s57, s33, {buf + i*1024}
                        s_mov_b32 m0, s57
                        s_nop 0
                        buffer_load_dwordx4 v9, s[36:39], s56 offen lds
                        """)
                    else:
                        a(f"""
                        s_mul_i32 s56, s34, 2752
                        s_sub_u32 s57, s14, 6
                        s_lshl_b32 s57, s57, 8
                        s_add_u32 s56, s56, s57
                        s_add_u32 s56, s56, {kq*128*2752 + g*128 + i*4*2752}
                        s_add_u32 s57, s33, {buf + i*1024}
                        s_mov_b32 m0, s57
                        v_add_co_u32 v14, vcc, s56, v10
                        s_nop 1
                        v_addc_co_u32 v15, vcc, 0, v11, vcc
                        global_load_lds_dwordx4 v[14:15], off
                        """)
                    vm.add(f"w{t}", 1)
                out.append(piece)
            return out
        def single_load():
            buf = 98304
            a(f"""
            s_mul_i32 s30, s3, {64*2752}
            s_lshl_b32 s31, s14, 5
            s_add_u32 s30, s30, s31
            s_add_u32 s30, s30, {80*32}
            """)
            for i in range(4):
                a(f"""
                s_add_u32 s31, s33, {buf + i*1024}
                s_mov_b32 m0, s31
                v_add_co_u32 v14, vcc, s30, v12
                s_add_u32 s30, s30, {16*2752}
                s_nop 0
                v_addc_co_u32 v15, vcc, 0, v13, vcc
                global_load_lds_dwordx4 v[14:15], off
                """)
            vm.add("w8", 4)
        stage_load(0)
        a("""
        v_and_b32 v6, 15, v3
        v_lshlrev_b32 v7, 10, v3
        v_add_u32 v7, s29, v7
        """)
        for b in range(8):
            a(f"""
            v_add_u32 v8, {2*b}, v4
            v_xor_b32 v8, v8, v6
            v_lshl_add_u32 v{16+b}, v8, 4, v7
            """)
        vm.wait(a, "x")
        a("s_barrier")
        stamp(a, 60)
        for j in range(32):
            a(f"ds_read_b128 {vr(XA+4*j,4)}, v{16+(j&7)} offset:{256*(j>>3)}")
            if j % 8 == 7:
                a("s_waitcnt lgkmcnt(0)")
        a("s_barrier")
        stamp(a, 60)
        pend = []
        for t in (1, 2, 3):
            pend += stage_pieces(t)
        a("""
        v_mov_b32 v20, 0x3f803f80
        v_mov_b32 v21, 0
        v_mov_b32 v22, 0
        v_mov_b32 v25, 0x00003f80
        v_mov_b32 v26, 0x3f800000
        """)
        for j in range(0, 128, 2):
            a(f"v_dot2_f32_bf16 v21, v{XA+j}, v20, v21")
            a(f"v_dot2_f32_bf16 v22, v{XA+j+1}, v20, v22")
            if j % 32 == 30:
                pend.pop(0)()
        a(f"""
        s_nop 3
        v_add_f32 v21, v21, v22
        v_mov_b32 v22, v21
        s_nop 1
        v_permlane32_swap_b32 v21, v22
        s_nop 1
        v_add_f32 v21, v21, v22
        v_mul_f32 v21, {f32(1.0/512)}, v21
        v_cvt_pk_bf16_f32 v22, v21, v21
        v_and_b32 v22, 0xffff0000, v22
        v_sub_f32 v23, v21, v22
        v_sub_f32 v22, 0, v22
        v_mov_b32 v24, 0
        v_mov_b32 v27, 0
        """)
        for j0 in range(0, 128, 4):
            for q in range(4):
                a(f"v_dot2_f32_bf16 v{28+2*q}, v{XA+j0+q}, v25, v22")
                a(f"v_dot2_f32_bf16 v{29+2*q}, v{XA+j0+q}, v26, v22")
            for q in range(4):
                a(f"v_cvt_pk_bf16_f32 v{XA+j0+q}, v{28+2*q}, v{29+2*q}")
            for q in range(4):
                acc = 24 if q % 2 == 0 else 27
                a(f"v_dot2_f32_bf16 v{acc}, v{XA+j0+q}, v{XA+j0+q}, v{acc}")
            if j0 % 16 == 12 and pend:
                pend.pop(0)()
        while pend:
            pend.pop(0)()
        if kind != "ffn":
            single_load()
        a(f"""
        s_nop 3
        v_add_f32 v24, v24, v27
        v_mov_b32 v27, v24
        s_nop 1
        v_permlane32_swap_b32 v24, v27
        s_nop 1
        v_add_f32 v24, v24, v27
        v_mul_f32 v24, {f32(1.0/512)}, v24
        v_fma_f32 v24, -v23, v23, v24
        v_max_f32 v24, 0, v24
        v_cvt_pk_bf16_f32 v24, v24, v24
        v_and_b32 v24, 0xffff0000, v24
        v_add_f32 v24, {f32(1e-5)}, v24
        v_cvt_pk_bf16_f32 v24, v24, v24
        v_and_b32 v24, 0xffff0000, v24
        v_sqrt_f32 v24, v24
        s_nop 0
        v_cvt_pk_bf16_f32 v24, v24, v24
        v_and_b32 v24, 0xffff0000, v24
        v_rcp_f32 v24, v24
        """)
        if kind == "v":
            a("s_nop 1")
            for r in range(16):
                a(f"v_lshlrev_b32 v25, 4, v4")
                a(f"v_add_u32 v25, {((r&3) + 8*(r>>2))*4}, v25")
                a(f"ds_bpermute_b32 v{96+r}, v25, v24")
        a("""
        v_lshlrev_b32 v26, 3, v4
        v_and_b32 v27, 15, v2
        v_lshrrev_b32 v27, 2, v27
        v_add_u32 v26, v26, v27
        v_and_b32 v27, 3, v27
        v_lshrrev_b32 v28, 4, v2
        v_and_b32 v28, 1, v28
        v_and_b32 v29, 3, v2
        v_lshlrev_b32 v29, 3, v29
        v_lshl_add_u32 v29, v26, 8, v29
        s_lshl_b32 s43, s41, 1
        """)
        for jj in range(2):
            a(f"s_add_u32 s30, s43, {jj}")
            if kind != "ffn":
                a(f"""
                v_xor_b32 v30, s30, v27
                v_lshl_add_u32 v30, v30, 6, v29
                v_lshl_add_u32 v{16+jj}, v28, 5, v30
                """)
            else:
                a(f"""
                s_xor_b32 s31, s30, 1
                s_add_u32 s31, s31, 4
                v_cmp_ne_u32 vcc, 0, v28
                v_mov_b32 v30, s30
                v_mov_b32 v31, s31
                s_nop 0
                v_cndmask_b32 v30, v30, v31, vcc
                v_lshrrev_b32 v31, 1, v30
                v_xor_b32 v31, v31, v27
                v_and_b32 v30, 1, v30
                v_lshl_add_u32 v31, v31, 6, v29
                v_lshl_add_u32 v{16+jj}, v30, 5, v31
                """)
        if kind != "ffn":
            a("""
            v_lshlrev_b32 v20, 6, v26
            v_lshl_add_u32 v20, v28, 5, v20
            v_and_b32 v30, 3, v2
            v_lshl_add_u32 v20, v30, 3, v20
            v_lshlrev_b32 v22, 5, v5
            v_lshl_add_u32 v22, v4, 4, v22
            v_add_u32 v36, 98304, v20
            """)
        if kind == "v":
            a("""
            v_lshlrev_b32 v21, 4, v2
            s_lshl_b32 s30, s26, 10
            v_add_u32 v21, s30, v21
            """)
        else:
            a("""
            v_lshlrev_b32 v21, 5, v5
            v_lshl_add_u32 v21, v4, 4, v21
            """)
        a(f"""
        v_lshlrev_b32 v6, 13, v4
        v_lshl_add_u32 v6, v3, 1, v6
        v_add_u32 v6, s35, v6
        s_cmp_ge_u32 s52, 1888
        s_cbranch_scc1 {P}_wtd
        s_cmp_ge_u32 s53, 32
        s_cbranch_scc1 {P}_wtb
        s_lshl_b32 s54, s53, 14
        s_add_u32 s27, s54, 4096
        """)
        def wt_loads(srd):
            for i in range(8):
                so = "s54" if i < 4 else "s27"
                a(f"buffer_load_ushort v{26+i}, v6, {srd}, {so} offen offset:{(i&3)*1024}")
        wt_loads("s[44:47]")
        a(f"s_branch {P}_wtd")
        a.label(f"{P}_wtb")
        a("""
        s_sub_u32 s54, s53, 32
        s_lshl_b32 s54, s54, 14
        s_add_u32 s27, s54, 4096
        """)
        wt_loads("s[48:51]")
        a.label(f"{P}_wtd")
        stamp(a, 60)

        def pack_store(A, n4, soff, voff="v21"):
            a(f"""
            s_nop 1
            v_permlane32_swap_b32 v{A}, v{A+2}
            v_permlane32_swap_b32 v{A+1}, v{A+3}
            buffer_store_dwordx4 {vr(A,4)}, {voff}, s[20:23], {soff} offen
            """)
            vm.add("st", 1)

        SA_ = 112
        def epilogue(units, first_unit_expr, ekind=None, base=None):
            ek = ekind or kind
            ACC_ = base if base is not None else ACC
            a("s_nop 15")
            a(first_unit_expr)
            if ek == "qk":
                a(f"""
                s_cmp_lt_u32 s14, 2
                s_cselect_b32 s31, {f32(QSCALE)}, 1.0
                v_mul_f32 v38, s31, v24
                s_lshl_b32 s30, s30, 17
                """)
                for j in range(units):
                    A = ACC + 16 * j
                    for r in range(16):
                        a(f"v_mul_f32 v{A+r}, v38, v{A+r}")
                    for r in range(8):
                        a(f"v_cvt_pk_bf16_f32 v{A+r}, v{A+2*r}, v{A+2*r+1}")
                    a(f"s_add_u32 s31, s30, {j*131072}")
                    a(f"s_add_u32 s32, s30, {j*131072 + 65536}")
                    pack_store(A, 1, "s31")
                    pack_store(A + 4, 1, "s32")
            elif ek == "v":
                a(f"""
                s_lshl_b32 s30, s30, 11
                s_add_u32 s30, s30, {WS_VT}
                s_waitcnt lgkmcnt(0)
                """)
                for j in range(units):
                    A = ACC + 16 * j
                    for r in range(16):
                        a(f"v_mul_f32 v{A+r}, v{96+r}, v{A+r}")
                    for r in range(8):
                        a(f"v_cvt_pk_bf16_f32 v{A+r}, v{A+2*r}, v{A+2*r+1}")
                    a(f"""
                    s_add_u32 s31, s30, {j*2048}
                    buffer_store_dwordx4 {vr(A,4)}, v21, s[20:23], s31 offen
                    buffer_store_dwordx4 {vr(A+4,4)}, v21, s[20:23], s31 offen offset:1024
                    """)
                    vm.add("st", 2)
            else:
                a(f"""
                s_lshl_b32 s30, s30, 16
                s_add_u32 s30, s30, {WS_A + 32*65536}
                v_mul_f32 v38, {f32(-LOG2E)}, v24
                v_mul_f32 v39, v24, v24
                """)
                for j in range(units):
                    A = ACC_ + 16 * j
                    T = FR
                    for r in range(8):
                        a(f"v_mul_f32 v{T+r}, v38, v{A+r}")
                    for r in range(8):
                        a(f"v_exp_f32 v{T+r}, v{T+r}")
                    for r in range(8):
                        a(f"v_mul_f32 v{A+r}, v{A+r}, v{A+8+r}")
                    for r in range(8):
                        a(f"v_add_f32 v{T+r}, 1.0, v{T+r}")
                    for r in range(8):
                        a(f"v_rcp_f32 v{T+r}, v{T+r}")
                    for r in range(8):
                        a(f"v_mul_f32 v{A+r}, v39, v{A+r}")
                    for r in range(8):
                        a(f"v_mul_f32 v{A+r}, v{T+r}, v{A+r}")
                    for r in range(4):
                        a(f"v_cvt_pk_bf16_f32 v{A+r}, v{A+2*r}, v{A+2*r+1}")
                    a(f"s_add_u32 s31, s30, {j*65536}")
                    pack_store(A, 1, "s31", "v21" if kind == "ffn" else "v22")
            a("s_nop 1")

        for t in range(8):
            g, kq = t >> 2, t & 3
            vm.wait(a, f"w{t}")
            a("s_waitcnt lgkmcnt(0)")
            a("s_barrier")
            if t == 4:
                a(f"""
                s_cmp_ge_u32 s52, 1888
                s_cbranch_scc1 {P}_wts
                v_lshlrev_b32 v6, 4, v2
                v_lshl_or_b32 v26, v27, 16, v26
                v_lshl_or_b32 v27, v29, 16, v28
                v_lshl_or_b32 v28, v31, 16, v30
                v_lshl_or_b32 v29, v33, 16, v32
                buffer_store_dwordx4 v[26:29], v6, s[20:23], s55 offen
                """)
                a.label(f"{P}_wts")
            pend = []
            if t >= 1:
                if t + 3 < 8:
                    pend = stage_pieces(t + 3)
            buf = BUFS[t % 4]
            for jj in range(2):
                a(f"v_add_u32 v{34+jj}, {buf}, v{16+jj}")
            seq = [(s, jj) for s in range(8) for jj in range(2)]
            def rd(i):
                s, jj = seq[i]
                f = FR + 4 * (i % NFR)
                a(f"ds_read_b64_tr_b16 {vr(f,2)}, v{34+jj} offset:{4096*s}")
                a(f"ds_read_b64_tr_b16 {vr(f+2,2)}, v{34+jj} offset:{4096*s+1024}")
            for i in range(NFR - 1):
                rd(i)
            for i in range(16):
                s, jj = seq[i]
                if i + NFR - 1 < 16:
                    rd(i + NFR - 1)
                a(f"s_waitcnt lgkmcnt({2*min(NFR-1, 15-i)})")
                f = FR + 4 * (i % NFR)
                A = ACC + 16 * jj
                c = "0" if (kq == 0 and s == 0) else vr(A, 16)
                w, x = vr(f, 4), vr(XA + 4 * (kq * 8 + s), 4)
                if kind == "v":
                    a(f"v_mfma_f32_32x32x16_bf16 {vr(A,16)}, {x}, {w}, {c}")
                else:
                    a(f"v_mfma_f32_32x32x16_bf16 {vr(A,16)}, {w}, {x}, {c}")
                if i % 4 == 1 and pend:
                    pend.pop(0)()
            if kind != "ffn" and t >= 4:
                a("s_cmp_lg_u32 s41, 0")
                a(f"s_cbranch_scc1 {P}_sk{t}")
                b0 = 8 * (t - 4)
                def rds(i):
                    f = FR + 4 * (i % NFR)
                    a(f"ds_read_b64_tr_b16 {vr(f,2)}, v36 offset:{1024*(b0+i)}")
                    a(f"ds_read_b64_tr_b16 {vr(f+2,2)}, v36 offset:{1024*(b0+i)+256}")
                for i in range(NFR - 1):
                    rds(i)
                for i in range(8):
                    if i + NFR - 1 < 8:
                        rds(i + NFR - 1)
                    a(f"s_waitcnt lgkmcnt({2*min(NFR-1, 7-i)})")
                    f = FR + 4 * (i % NFR)
                    c = "0" if b0 + i == 0 else vr(SA_, 16)
                    a(f"v_mfma_f32_32x32x16_bf16 {vr(SA_,16)}, {vr(f,4)}, {vr(XA+4*(b0+i),4)}, {c}")
                a.label(f"{P}_sk{t}")
            if kq == 3:
                sub = {"qk": 0, "v": 4, "ffn": 6}[kind]
                fu = f"s_sub_u32 s30, s14, {sub}\ns_lshl_b32 s30, s30, 3\ns_add_u32 s30, s30, {g*4}\ns_add_u32 s30, s30, s43"
                epilogue(2, fu)
        if kind != "ffn":
            a("s_cmp_lg_u32 s41, 0")
            a("s_cbranch_scc1 K1_done")
            epilogue(1, "s_add_u32 s30, s14, 80", "ffn", SA_)
        a("s_branch K1_done")

    path("qk")
    a.label("K1_v")
    path("v")
    a.label("K1_ffn")
    path("ffn")
    a.label("K1_done")
    stamp(a, 60)
    stamp_flush(a, 60, tid=STID)
    a.label("K1_end")
    a("s_endpgm")

def gen_k2(a):
    kernel_head(a, "k2_kernel")
    VROW = 4112
    VBASE = 65536
    a(f"""
    s_cmp_ge_u32 s2, 256
    s_cbranch_scc1 K2_end
    s_load_dwordx2 s[4:5], s[0:1], 72
    v_lshrrev_b32 v1, 6, v0
    v_and_b32 v2, 63, v0
    s_nop 0
    v_readfirstlane_b32 s3, v1
    s_and_b32 s14, s2, 7
    s_lshl_b32 s14, s14, 2
    s_lshr_b32 s15, s2, 3
    s_and_b32 s15, s15, 3
    s_add_u32 s14, s14, s15
    s_lshr_b32 s15, s2, 5
    s_lshl_b32 s16, s15, 8
    s_lshl_b32 s17, s3, 5
    s_add_u32 s16, s16, s17
    s_lshl_b32 s17, s14, 16
    v_and_b32 v3, 31, v2
    v_lshrrev_b32 v4, 5, v2
    v_add_u32 v5, s16, v3
    v_lshlrev_b32 v6, 5, v5
    v_lshl_add_u32 v6, v4, 4, v6
    v_lshlrev_b32 v7, 4, v2
    s_waitcnt lgkmcnt(0)
    s_mov_b32 s8, s4
    s_mov_b32 s9, s5
    s_mov_b32 s10, {WS_SIZE}
    s_mov_b32 s11, 0x00020000
    buffer_load_dwordx4 v[8:11], v6, s[8:11], s17 offen
    s_lshl_b32 s18, s3, 13
    s_add_u32 s19, s17, s18
    s_add_u32 s19, s19, {WS_K}
    """)
    stamp(a, 60)
    a(f"""
    s_lshl_b32 s24, s3, 11
    s_add_u32 s25, s17, s24
    s_add_u32 s25, s25, {WS_K}
    """)
    for p in range(4):
        for i in range(2):
            a(f"""
            s_add_u32 s20, s24, {p*16384 + i*1024}
            s_mov_b32 m0, s20
            s_add_u32 s21, s25, {p*16384 + i*1024}
            buffer_load_dwordx4 v7, s[8:11], s21 offen lds
            """)
    a(f"""
    v_lshrrev_b32 v12, 5, v2
    v_lshlrev_b32 v12, 10, v12
    v_lshrrev_b32 v13, 4, v2
    v_and_b32 v13, 1, v13
    v_lshl_add_u32 v12, v13, 9, v12
    v_and_b32 v13, 15, v2
    v_lshl_add_u32 v12, v13, 4, v12
    s_and_b32 s19, s14, 1
    s_lshl_b32 s19, s19, 8
    s_lshr_b32 s20, s14, 1
    s_lshl_b32 s20, s20, 11
    s_add_u32 s19, s19, s20
    s_lshl_b32 s20, s3, 18
    s_add_u32 s19, s19, s20
    s_add_u32 s19, s19, {WS_VT}
    s_add_u32 s22, s18, {VBASE}
    """)
    for i in range(8):
        a(f"""
        s_add_u32 s20, s22, {i*1024}
        s_mov_b32 m0, s20
        s_add_u32 s21, s19, {i*32768}
        buffer_load_dwordx4 v12, s[8:11], s21 offen lds
        """)
    X = 64
    Y = 128
    FX = 16
    FY = 32
    a(f"""
    v_lshlrev_b32 v12, 5, v3
    v_lshl_add_u32 v12, v4, 4, v12
    v_mov_b32 v13, 0xff7fffff
    v_mov_b32 v14, 0xff7fffff
    """)
    for r in range(64):
        a(f"v_mov_b32 v{Y+r}, 0xff7fffff")
    a("""
    s_waitcnt vmcnt(14)
    s_barrier
    """)
    stamp(a, 60)
    def maxes(S):
        for r in range(0, 16, 4):
            a(f"v_max3_f32 v13, v13, v{S+r}, v{S+r+1}")
            a(f"v_max3_f32 v14, v14, v{S+r+2}, v{S+r+3}")
    for k in range(4):
        a(f"ds_read_b128 {vr(FX+4*k,4)}, v12 offset:{1024*k}")
    for it in range(8):
        for k in range(4):
            a(f"ds_read_b128 {vr(FY+4*k,4)}, v12 offset:{1024*(8*it+4+k)}")
        a("s_waitcnt lgkmcnt(4)")
        for k in range(4):
            a(f"v_mfma_f32_32x32x16_bf16 {vr(X+16*k,16)}, {vr(FX+4*k,4)}, v[8:11], 0")
            maxes(Y + 16 * k)
        if it < 7:
            if it % 2 == 1:
                a(f"s_waitcnt vmcnt({14 - (it+1)})")
                a("s_barrier")
            for k in range(4):
                a(f"ds_read_b128 {vr(FX+4*k,4)}, v12 offset:{1024*(8*it+8+k)}")
            a("s_waitcnt lgkmcnt(4)")
        else:
            a("s_waitcnt lgkmcnt(0)")
        for k in range(4):
            a(f"v_mfma_f32_32x32x16_bf16 {vr(Y+16*k,16)}, {vr(FY+4*k,4)}, v[8:11], 0")
            maxes(X + 16 * k)
    a("s_nop 15")
    for k in range(4):
        maxes(Y + 16 * k)
    stamp(a, 60)
    CM = 48
    SA = 64
    SB = 80
    O = 96
    KB = [16, 20]
    VB = [[24, 28], [32, 36]]
    P = [40, 44]
    a(f"""
    v_max_f32 v13, v13, v14
    v_mov_b32 v14, v13
    s_nop 1
    v_permlane32_swap_b32 v13, v14
    s_nop 1
    v_max_f32 v13, v13, v14
    v_sub_f32 v13, 0, v13
    """)
    for r in range(16):
        a(f"v_mov_b32 v{CM+r}, v13")
        a(f"v_mov_b32 v{O+r}, 0")
    a(f"""
    s_waitcnt lgkmcnt(0)
    v_cmp_eq_u32 vcc, 16, v3
    v_mov_b32 v15, 0x3f803f80
    s_nop 1
    v_cndmask_b32 v15, 0, v15, vcc
    """)
    for r in range(16):
        a(f"v_mov_b32 v{24+r}, v15")
    a(f"""
    v_lshlrev_b32 v12, 5, v3
    v_lshl_add_u32 v12, v4, 4, v12
    v_lshlrev_b32 v15, 4, v3
    v_lshl_add_u32 v15, v4, 8, v15
    v_add_u32 v15, {VBASE}, v15
    s_mov_b32 s26, 0x0000ffff
    s_mov_b32 s27, 0x0000ffff
    s_waitcnt vmcnt(0)
    s_barrier
    ds_read_b128 {vr(KB[0],4)}, v12
    ds_read_b128 {vr(KB[1],4)}, v12 offset:1024
    s_mov_b64 exec, s[26:27]
    ds_read_b128 {vr(VB[0][0],4)}, v15
    ds_read_b128 {vr(VB[0][1],4)}, v15 offset:512
    s_mov_b64 exec, -1
    s_waitcnt lgkmcnt(0)
    v_mfma_f32_32x32x16_bf16 {vr(SA,16)}, {vr(KB[0],4)}, v[8:11], {vr(CM,16)}
    s_mov_b32 s23, 0
    s_and_b32 s36, s3, 1
    s_lshr_b32 s37, s3, 1
    s_and_b32 s37, s37, 1
    s_lshr_b32 s38, s3, 2
    s_lshl_b32 s39, s14, 1
    s_add_u32 s39, s39, s36
    s_lshl_b32 s40, s15, 1
    s_add_u32 s40, s40, s37
    s_add_u32 s41, s38, 32
    s_lshl_b32 s42, s41, 16
    s_lshl_b32 s43, s39, 10
    s_add_u32 s42, s42, s43
    s_add_u32 s42, s42, {WS_A}
    s_mul_i32 s43, s40, 118
    s_add_u32 s43, s43, s41
    s_lshl_b32 s43, s43, 10
    s_add_u32 s43, s43, {WS_WT}
    """)
    a("""
    v_lshlrev_b32 v160, 5, v3
    v_lshl_add_u32 v160, v4, 4, v160
    """)
    GA = 112
    GR = 128
    def gload(i):
        f = GR + 8 * (i % 4)
        a(f"""
        buffer_load_dwordx4 {vr(f,4)}, v160, s[8:11], s42 offen
        buffer_load_dwordx4 {vr(f+4,4)}, v7, s[8:11], s43 offen
        s_add_u32 s42, s42, 131072
        s_add_u32 s43, s43, 2048
        """)
    gload(0)
    gload(1)
    S = [SA, SB]
    def tile(t, g, gl, first):
        u = t & 1
        cur, nxt = S[u], S[1 - u]
        a(f"""
        s_waitcnt lgkmcnt(0)
        ds_read_b128 {vr(KB[u],4)}, v12 offset:{1024*(t+2)}
        s_mov_b64 exec, s[26:27]
        ds_read_b128 {vr(VB[1-u][0],4)}, v15 offset:{1024*(t+1)}
        ds_read_b128 {vr(VB[1-u][1],4)}, v15 offset:{1024*(t+1)+512}
        s_mov_b64 exec, -1
        v_mfma_f32_32x32x16_bf16 {vr(nxt,16)}, {vr(KB[1-u],4)}, v[8:11], {vr(CM,16)}
        """)
        if gl:
            gload(t + 2)
        for r in range(8):
            a(f"v_exp_f32 v{cur+r}, v{cur+r}")
        for r in range(4):
            a(f"v_cvt_pk_bf16_f32 v{P[0]+r}, v{cur+2*r}, v{cur+2*r+1}")
        for r in range(8, 16):
            a(f"v_exp_f32 v{cur+r}, v{cur+r}")
        a(f"v_mfma_f32_32x32x16_bf16 {vr(O,16)}, {vr(VB[u][0],4)}, {vr(P[0],4)}, {vr(O,16)}")
        for r in range(4):
            a(f"v_cvt_pk_bf16_f32 v{P[1]+r}, v{cur+8+2*r}, v{cur+8+2*r+1}")
        if g is not None:
            f = GR + 8 * (t % 4)
            a(f"s_waitcnt vmcnt({g})")
            c = "0" if first else vr(GA, 16)
            a(f"v_mfma_f32_32x32x16_bf16 {vr(GA,16)}, {vr(f+4,4)}, {vr(f,4)}, {c}")
        else:
            a("s_nop 1")
        a(f"v_mfma_f32_32x32x16_bf16 {vr(O,16)}, {vr(VB[u][1],4)}, {vr(P[1],4)}, {vr(O,16)}")
    def advance():
        a("""
        v_add_u32 v12, 4096, v12
        v_add_u32 v15, 4096, v15
        """)
    stamp(a, 60)
    for t in range(4):
        tile(t, 4, True, t == 0)
    advance()
    a.label("K2_p2a")
    for t in range(4):
        tile(t, 4, True, False)
    advance()
    a("""
    s_add_u32 s23, s23, 1
    s_cmp_lt_u32 s23, 9
    s_cbranch_scc1 K2_p2a
    """)
    tile(0, 4, True, False)
    tile(1, 2, False, False)
    tile(2, 0, False, False)
    tile(3, None, False, False)
    advance()
    a("s_mov_b32 s23, 0")
    a.label("K2_p2b")
    for t in range(4):
        tile(t, None, False, False)
    advance()
    a(f"""
    s_add_u32 s23, s23, 1
    s_cmp_lt_u32 s23, 5
    s_cbranch_scc1 K2_p2b
    s_nop 15
    s_waitcnt lgkmcnt(0)
    s_barrier
    s_and_b32 s44, s3, 3
    s_lshl_b32 s44, s44, 12
    v_add_u32 v16, s44, v7
    s_cmp_eq_u32 s38, 0
    s_cbranch_scc1 K2_red
    ds_write_b128 v16, {vr(GA,4)}
    ds_write_b128 v16, {vr(GA+4,4)} offset:1024
    ds_write_b128 v16, {vr(GA+8,4)} offset:2048
    ds_write_b128 v16, {vr(GA+12,4)} offset:3072
    s_waitcnt lgkmcnt(0)
    s_barrier
    s_branch K2_fin
    """)
    a.label("K2_red")
    a(f"""
    s_barrier
    ds_read_b128 v[20:23], v16
    ds_read_b128 v[24:27], v16 offset:1024
    ds_read_b128 v[28:31], v16 offset:2048
    ds_read_b128 v[32:35], v16 offset:3072
    s_lshl_b32 s44, s39, 4
    s_add_u32 s44, s44, s40
    s_lshl_b32 s44, s44, 12
    s_add_u32 s44, s44, {WS_P}
    s_waitcnt lgkmcnt(0)
    """)
    for r in range(16):
        a(f"v_add_f32 v{GA+r}, v{20+r}, v{GA+r}")
    for q in range(4):
        a(f"buffer_store_dwordx4 {vr(GA+4*q,4)}, v7, s[8:11], s44 offen offset:{1024*q}")
    a.label("K2_fin")
    a(f"""
    v_mov_b32 v13, v{O+8}
    v_mov_b32 v14, v{O+8}
    s_nop 1
    v_permlane32_swap_b32 v13, v14
    s_nop 1
    v_rcp_f32 v13, v13
    s_nop 0
    """)
    for r in range(8):
        a(f"v_mul_f32 v{O+r}, v13, v{O+r}")
    for r in range(4):
        a(f"v_cvt_pk_bf16_f32 v{40+r}, v{O+2*r}, v{O+2*r+1}")
    a(f"""
    v_lshlrev_b32 v6, 5, v5
    v_lshl_add_u32 v6, v4, 3, v6
    s_add_u32 s20, s17, {WS_A}
    buffer_store_dwordx2 v[40:41], v6, s[8:11], s20 offen
    buffer_store_dwordx2 v[42:43], v6, s[8:11], s20 offen offset:16
    """)
    stamp(a, 60)
    stamp_flush(a, 60, tid=STID)
    a.label("K2_end")
    a("s_endpgm")

def gen_k3(a):
    kernel_head(a, "k3_kernel")
    ACC = 16
    PB = 32
    XB = 48
    RING = 64
    a(f"""
    s_cmp_ge_u32 s2, 256
    s_cbranch_scc1 K3_end
    s_load_dwordx2 s[4:5], s[0:1], 0
    s_load_dwordx2 s[10:11], s[0:1], 56
    s_load_dwordx2 s[12:13], s[0:1], 72
    v_lshrrev_b32 v1, 6, v0
    v_and_b32 v2, 63, v0
    s_nop 0
    v_readfirstlane_b32 s3, v1
    s_and_b32 s14, s2, 7
    s_lshl_b32 s14, s14, 2
    s_lshr_b32 s15, s2, 3
    s_and_b32 s15, s15, 3
    s_add_u32 s14, s14, s15
    s_lshr_b32 s15, s2, 5
    s_and_b32 s36, s3, 1
    s_lshr_b32 s37, s3, 1
    s_lshl_b32 s39, s14, 1
    s_add_u32 s39, s39, s36
    s_lshl_b32 s40, s15, 1
    s_add_u32 s40, s40, s37
    v_and_b32 v3, 31, v2
    v_lshrrev_b32 v4, 5, v2
    s_lshl_b32 s38, s39, 5
    v_add_u32 v5, s38, v3
    v_lshlrev_b32 v7, 4, v2
    v_lshlrev_b32 v8, 5, v3
    v_lshl_add_u32 v8, v4, 4, v8
    s_waitcnt lgkmcnt(0)
    s_mov_b32 s16, s4
    s_mov_b32 s17, s5
    s_mov_b32 s18, 0x200000
    s_mov_b32 s19, 0x00020000
    s_mov_b32 s28, s10
    s_mov_b32 s29, s11
    s_mov_b32 s30, 0x200000
    s_mov_b32 s31, 0x00020000
    s_mov_b32 s32, s12
    s_mov_b32 s33, s13
    s_mov_b32 s34, {WS_SIZE}
    s_mov_b32 s35, 0x00020000
    s_lshl_b32 s42, s39, 10
    s_add_u32 s42, s42, {WS_A}
    s_mul_i32 s43, s40, {118*1024}
    s_add_u32 s43, s43, {WS_WT}
    s_lshl_b32 s44, s39, 4
    s_add_u32 s44, s44, s40
    s_lshl_b32 s44, s44, 12
    s_add_u32 s44, s44, {WS_P}
    v_lshlrev_b32 v6, 10, v5
    v_lshl_add_u32 v6, v4, 4, v6
    s_lshl_b32 s45, s40, 6
    """)
    stamp(a, 60)
    def ld(i):
        f = RING + 8 * (i % 16)
        a(f"""
        buffer_load_dwordx4 {vr(f,4)}, v8, s[32:35], s42 offen
        buffer_load_dwordx4 {vr(f+4,4)}, v7, s[32:35], s43 offen
        s_add_u32 s42, s42, 65536
        s_add_u32 s43, s43, 1024
        """)
    for i in range(16):
        ld(i)
    for q in range(4):
        a(f"buffer_load_dwordx4 {vr(PB+4*q,4)}, v7, s[32:35], s44 offen offset:{1024*q}")
    a("buffer_load_dwordx4 v[48:51], v6, s[16:19], s45 offen")
    a("buffer_load_dwordx4 v[52:55], v6, s[16:19], s45 offen offset:32")
    for i in range(32):
        if i < 16:
            n = 2 * (15 - i) + 6 + 2 * i
        else:
            n = 2 * (31 - i)
        a(f"s_waitcnt vmcnt({n})")
        f = RING + 8 * (i % 16)
        c = "0" if i == 0 else vr(ACC, 16)
        a(f"v_mfma_f32_32x32x16_bf16 {vr(ACC,16)}, {vr(f+4,4)}, {vr(f,4)}, {c}")
        if i < 16:
            ld(i + 16)
    a("s_nop 15")
    for r in range(16):
        a(f"v_add_f32 v{ACC+r}, v{PB+r}, v{ACC+r}")
    for q in range(2):
        B = ACC + 8 * q
        a(f"""
        v_permlane32_swap_b32 v{B}, v{B+4}
        v_permlane32_swap_b32 v{B+1}, v{B+5}
        v_permlane32_swap_b32 v{B+2}, v{B+6}
        v_permlane32_swap_b32 v{B+3}, v{B+7}
        """)
    for q in range(2):
        B = ACC + 8 * q
        for r in range(4):
            a(f"""
            v_lshlrev_b32 v40, 16, v{XB+4*q+r}
            v_and_b32 v41, 0xffff0000, v{XB+4*q+r}
            v_add_f32 v{B+2*r}, v40, v{B+2*r}
            v_add_f32 v{B+2*r+1}, v41, v{B+2*r+1}
            v_cvt_pk_bf16_f32 v{56+4*q+r}, v{B+2*r}, v{B+2*r+1}
            """)
    a("""
    buffer_store_dwordx4 v[56:59], v6, s[28:31], s45 offen
    buffer_store_dwordx4 v[60:63], v6, s[28:31], s45 offen offset:32
    """)
    stamp(a, 60)
    stamp_flush(a, 60)
    a.label("K3_end")
    a("s_endpgm")

def main():
    a = Asm()
    a.raw("; @launch kernel=k1_kernel grid=(256,1,1) block=(512,1,1) lds=163840")
    a.raw("; @launch kernel=k2_kernel grid=(256,1,1) block=(512,1,1) lds=133120")
    a.raw("; @launch kernel=k3_kernel grid=(256,1,1) block=(256,1,1) lds=0")
    a.raw('.amdgcn_target "amdgcn-amd-amdhsa--gfx950"')
    a.raw(".text")
    gen_k1(a)
    gen_k2(a)
    gen_k3(a)
    a.raw('.section .rodata,"a"')
    a.raw(".p2align 6")
    a.raw(descriptor("k1_kernel", 256))
    a.raw(".p2align 6")
    a.raw(descriptor("k2_kernel", 192))
    a.raw(".p2align 6")
    a.raw(descriptor("k3_kernel", 192))
    open(OUT, "w").write(a.text())

main()
```

```python
import sys

OUT = "parallel_sum__mha_block__swiglu_ffn__prompt.s"

WS_Q = 0
WS_K = 2 << 20
WS_VT = 4 << 20
WS_A = 6 << 20
WS_WT = 14 << 20
WS_P = 16 << 20
WS_SIZE = 24 << 20

LOG2E = 1.4426950408889634
QSCALE = 0.25 * LOG2E

import struct
def f32(x):
    return "0x%08x" % struct.unpack("<I", struct.pack("<f", x))[0]

class Asm:
    def __init__(self):
        self.l = []
    def __call__(self, s):
        for line in s.strip("\n").split("\n"):
            self.l.append("    " + line.strip())
    def label(self, n):
        self.l.append(n + ":")
    def raw(self, s):
        self.l.append(s)
    def text(self):
        return "\n".join(self.l) + "\n"

STAMP = len(sys.argv) > 1 and sys.argv[1] == "stamp"
if STAMP:
    OUT = "stamped.s"
_st = [0]
STID = int(sys.argv[2]) if len(sys.argv) > 2 else 0
def stamp(a, sbase):
    if not STAMP:
        return
    i = _st[0]; _st[0] += 1
    if i == 0:
        a("s_memrealtime s[58:59]")
    a(f"s_memtime s[{sbase+2*i}:{sbase+2*i+1}]")
    a("s_waitcnt lgkmcnt(0)")
_cs = [0]
def cstamp(a, sbase, sreg, val):
    if not STAMP:
        return
    n = _cs[0]; _cs[0] += 1
    a(f"s_cmp_lg_u32 {sreg}, {val}")
    a(f"s_cbranch_scc1 CST_{n}")
    stamp(a, sbase)
    a.label(f"CST_{n}")

_kid = [0]
def stamp_flush(a, sbase, wg_s="s2", tid=0):
    if not STAMP:
        return
    n = _st[0]; _st[0] = 0
    kid = _kid[0]; _kid[0] += 1
    a(f"""
    s_memrealtime s[{sbase+2*n}:{sbase+2*n+1}]
    s_load_dwordx2 s[96:97], s[0:1], 72
    s_waitcnt lgkmcnt(0)
    s_mov_b32 s98, 0x4000000
    s_mov_b32 s99, 0x00020000
    s_lshl_b32 s93, {wg_s}, 8
    s_add_u32 s93, s93, {(32<<20) + kid*65536}
    v_cmp_eq_u32 vcc, {tid}, v0
    s_and_saveexec_b64 s[94:95], vcc
    s_cbranch_execz STR_{kid}
    v_mov_b32 v1, 0
    """)
    for i in range(n + 1):
        a(f"v_mov_b32 v2, s{sbase+2*i}")
        a(f"buffer_store_dword v2, v1, s[96:99], s93 offen offset:{4*i}")
    a(f"v_mov_b32 v2, s58")
    a(f"buffer_store_dword v2, v1, s[96:99], s93 offen offset:{4*(n+1)}")
    a(f"s_getreg_b32 s92, hwreg(HW_REG_XCC_ID)")
    a(f"v_mov_b32 v2, s92")
    a(f"v_add_u32 v2, 1, v2")
    a(f"buffer_store_dword v2, v1, s[96:99], s93 offen offset:{4*(n+2)}")
    a.label(f"STR_{kid}")
    a("s_mov_b64 exec, s[94:95]")

def vr(a, n):
    return f"v[{a}:{a+n-1}]"

def kernel_head(a, name):
    a.raw(f".globl {name}")
    a.raw(".p2align 8")
    a.raw(f".type {name},@function")
    a.label(name)

def descriptor(name, vgpr, sgpr=102):
    acc = (vgpr + 3) // 4 * 4
    return f""".amdhsa_kernel {name}
  .amdhsa_next_free_vgpr {vgpr}
  .amdhsa_next_free_sgpr {sgpr}
  .amdhsa_accum_offset {acc}
  .amdhsa_group_segment_fixed_size 0
  .amdhsa_kernarg_size 80
  .amdhsa_user_sgpr_count 2
  .amdhsa_user_sgpr_kernarg_segment_ptr 1
  .amdhsa_system_sgpr_workgroup_id_x 1
.end_amdhsa_kernel
"""

class VM:
    def __init__(self):
        self.ops = []
    def add(self, tag, n=1):
        self.ops += [tag] * n
    def wait(self, a, tag):
        last = max(i for i, t in enumerate(self.ops) if t == tag)
        n = len(self.ops) - 1 - last
        assert n <= 63
        a(f"s_waitcnt vmcnt({n})")

def gen_k1(a):
    kernel_head(a, "k1_kernel")
    XA = 128
    ACC = 64
    FR = 40
    NFR = 6
    BUFS = [131072, 0, 32768, 65536]
    EXC = 65536
    STATS = 98304
    a(f"""
    s_cmp_ge_u32 s2, 256
    s_cbranch_scc1 K1_end
    s_load_dwordx4 s[4:7], s[0:1], 0
    s_load_dwordx4 s[8:11], s[0:1], 32
    s_load_dwordx2 s[12:13], s[0:1], 72
    s_load_dwordx2 s[44:45], s[0:1], 16
    s_load_dwordx2 s[48:49], s[0:1], 48
    v_lshrrev_b32 v1, 6, v0
    v_and_b32 v2, 63, v0
    s_nop 0
    v_readfirstlane_b32 s3, v1
    s_and_b32 s14, s2, 1
    s_lshl_b32 s14, s14, 3
    s_lshr_b32 s15, s2, 5
    s_add_u32 s14, s14, s15
    s_lshr_b32 s15, s2, 1
    s_and_b32 s15, s15, 3
    s_lshl_b32 s15, s15, 2
    s_lshr_b32 s40, s2, 3
    s_and_b32 s40, s40, 3
    s_add_u32 s15, s15, s40
    s_and_b32 s40, s3, 3
    s_lshr_b32 s41, s3, 2
    s_lshl_b32 s26, s15, 7
    s_lshl_b32 s27, s40, 5
    s_add_u32 s26, s26, s27
    v_and_b32 v3, 31, v2
    v_lshrrev_b32 v4, 5, v2
    v_add_u32 v5, s26, v3
    s_waitcnt lgkmcnt(0)
    s_mov_b32 s16, s4
    s_mov_b32 s17, s5
    s_mov_b32 s18, 0x200000
    s_mov_b32 s19, 0x00020000
    s_mov_b32 s20, s12
    s_mov_b32 s21, s13
    s_mov_b32 s22, {WS_SIZE}
    s_mov_b32 s23, 0x00020000
    s_mov_b32 s36, s6
    s_mov_b32 s37, s7
    s_mov_b32 s38, {512*3072}
    s_mov_b32 s39, 0x00020000
    s_lshl_b32 s29, s40, 15
    s_lshl_b32 s42, s41, 14
    s_add_u32 s42, s42, s29
    s_lshl_b32 s28, s15, 17
    s_add_u32 s28, s28, s42
    """)
    stamp(a, 60)
    a(f"""
    s_mov_b32 s46, {512*1024}
    s_mov_b32 s47, 0x00020000
    s_mov_b32 s50, {1376*1024}
    s_mov_b32 s51, 0x00020000
    s_lshl_b32 s52, s2, 3
    s_add_u32 s52, s52, s3
    s_lshr_b32 s53, s52, 4
    s_and_b32 s54, s52, 15
    s_mul_i32 s55, s54, 118
    s_add_u32 s55, s55, s53
    s_lshl_b32 s55, s55, 10
    s_add_u32 s55, s55, {WS_WT}
    s_lshl_b32 s35, s54, 6
    """)
    vm0 = VM()
    for i in range(16):
        a(f"""
        v_xor_b32 v6, {i}, v2
        v_lshlrev_b32 v6, 4, v6
        s_add_u32 s30, s42, {i*1024}
        s_mov_b32 m0, s30
        s_add_u32 s31, s28, {i*1024}
        buffer_load_dwordx4 v6, s[16:19], s31 offen lds
        """)
        vm0.add("x")
    a("""
    v_lshrrev_b32 v6, 4, v2
    v_and_b32 v7, 15, v2
    v_lshlrev_b32 v8, 2, v6
    v_xor_b32 v7, v7, v8
    v_mul_u32_u24 v9, 3072, v6
    v_lshl_add_u32 v9, v7, 4, v9
    v_mul_u32_u24 v10, 2752, v6
    v_and_b32 v11, 8, v7
    v_cmp_ne_u32 vcc, 0, v11
    v_and_b32 v11, 7, v7
    v_xor_b32 v12, 2, v11
    v_mov_b32 v13, s8
    v_mov_b32 v14, s9
    v_mov_b32 v15, s10
    v_cndmask_b32 v11, v11, v12, vcc
    v_mov_b32 v12, s11
    v_cndmask_b32 v13, v13, v15, vcc
    v_cndmask_b32 v14, v14, v12, vcc
    v_lshl_add_u32 v10, v11, 4, v10
    v_add_co_u32 v10, vcc, v13, v10
    s_nop 1
    v_addc_co_u32 v11, vcc, 0, v14, vcc
    v_lshrrev_b32 v12, 2, v2
    v_mul_u32_u24 v12, 2752, v12
    v_and_b32 v13, 1, v2
    v_lshl_add_u32 v12, v13, 4, v12
    v_and_b32 v13, 2, v2
    v_cmp_ne_u32 vcc, 0, v13
    v_mov_b32 v13, s8
    v_mov_b32 v14, s9
    v_mov_b32 v15, s10
    v_mov_b32 v32, s11
    v_cndmask_b32 v13, v13, v15, vcc
    v_cndmask_b32 v14, v14, v32, vcc
    s_nop 1
    v_add_co_u32 v12, vcc, v13, v12
    s_nop 1
    v_addc_co_u32 v13, vcc, 0, v14, vcc
    s_lshl_b32 s33, s3, 12
    s_lshl_b32 s34, s3, 4
    s_cmp_ge_u32 s14, 6
    s_cbranch_scc1 K1_ffn
    s_cmp_ge_u32 s14, 4
    s_cbranch_scc1 K1_v
    """)
    st0 = _st[0]
    def path(kind):
        P = {"qk": "K1q", "v": "K1v", "ffn": "K1f"}[kind]
        vm = VM(); vm.ops = list(vm0.ops)
        _st[0] = st0
        def stage_load(t):
            g, kq = t >> 2, t & 3
            buf = BUFS[t % 4]
            if kind != "ffn":
                a(f"""
                s_mul_i32 s30, s34, 3072
                s_lshl_b32 s31, s14, 9
                s_add_u32 s30, s30, s31
                s_add_u32 s30, s30, {kq*128*3072 + g*256}
                """)
                for i in range(4):
                    a(f"""
                    s_add_u32 s31, s33, {buf + i*1024}
                    s_mov_b32 m0, s31
                    s_add_u32 s32, s30, {i*4*3072}
                    buffer_load_dwordx4 v9, s[36:39], s32 offen lds
                    """)
            else:
                a(f"""
                s_mul_i32 s30, s34, 2752
                s_sub_u32 s31, s14, 6
                s_lshl_b32 s31, s31, 8
                s_add_u32 s30, s30, s31
                s_add_u32 s30, s30, {kq*128*2752 + g*128}
                """)
                for i in range(4):
                    a(f"""
                    s_add_u32 s31, s33, {buf + i*1024}
                    s_mov_b32 m0, s31
                    v_add_co_u32 v14, vcc, s30, v10
                    s_add_u32 s30, s30, {4*2752}
                    s_nop 0
                    v_addc_co_u32 v15, vcc, 0, v11, vcc
                    global_load_lds_dwordx4 v[14:15], off
                    """)
            vm.add(f"w{t}", 4)
        def stage_pieces(t):
            g, kq = t >> 2, t & 3
            buf = BUFS[t % 4]
            out = []
            for i in range(4):
                def piece(i=i):
                    if kind != "ffn":
                        a(f"""
                        s_mul_i32 s56, s34, 3072
                        s_lshl_b32 s57, s14, 9
                        s_add_u32 s56, s56, s57
                        s_add_u32 s56, s56, {kq*128*3072 + g*256 + i*4*3072}
                        s_add_u32 s57, s33, {buf + i*1024}
                        s_mov_b32 m0, s57
                        s_nop 0
                        buffer_load_dwordx4 v9, s[36:39], s56 offen lds
                        """)
                    else:
                        a(f"""
                        s_mul_i32 s56, s34, 2752
                        s_sub_u32 s57, s14, 6
                        s_lshl_b32 s57, s57, 8
                        s_add_u32 s56, s56, s57
                        s_add_u32 s56, s56, {kq*128*2752 + g*128 + i*4*2752}
                        s_add_u32 s57, s33, {buf + i*1024}
                        s_mov_b32 m0, s57
                        v_add_co_u32 v14, vcc, s56, v10
                        s_nop 1
                        v_addc_co_u32 v15, vcc, 0, v11, vcc
                        global_load_lds_dwordx4 v[14:15], off
                        """)
                    vm.add(f"w{t}", 1)
                out.append(piece)
            return out
        def single_load():
            buf = 98304
            a(f"""
            s_mul_i32 s30, s3, {64*2752}
            s_lshl_b32 s31, s14, 5
            s_add_u32 s30, s30, s31
            s_add_u32 s30, s30, {80*32}
            """)
            for i in range(4):
                a(f"""
                s_add_u32 s31, s33, {buf + i*1024}
                s_mov_b32 m0, s31
                v_add_co_u32 v14, vcc, s30, v12
                s_add_u32 s30, s30, {16*2752}
                s_nop 0
                v_addc_co_u32 v15, vcc, 0, v13, vcc
                global_load_lds_dwordx4 v[14:15], off
                """)
            vm.add("w8", 4)
        stage_load(0)
        a("""
        v_and_b32 v6, 15, v3
        v_lshlrev_b32 v7, 10, v3
        v_add_u32 v7, s29, v7
        """)
        for b in range(8):
            a(f"""
            v_add_u32 v8, {2*b}, v4
            v_xor_b32 v8, v8, v6
            v_lshl_add_u32 v{16+b}, v8, 4, v7
            """)
        vm.wait(a, "x")
        a("s_barrier")
        stamp(a, 60)
        for j in range(32):
            a(f"ds_read_b128 {vr(XA+4*j,4)}, v{16+(j&7)} offset:{256*(j>>3)}")
            if j % 8 == 7:
                a("s_waitcnt lgkmcnt(0)")
        a("s_barrier")
        stamp(a, 60)
        pend = []
        for t in (1, 2, 3):
            pend += stage_pieces(t)
        a("""
        v_mov_b32 v20, 0x3f803f80
        v_mov_b32 v21, 0
        v_mov_b32 v22, 0
        v_mov_b32 v25, 0x00003f80
        v_mov_b32 v26, 0x3f800000
        """)
        for j in range(0, 128, 2):
            a(f"v_dot2_f32_bf16 v21, v{XA+j}, v20, v21")
            a(f"v_dot2_f32_bf16 v22, v{XA+j+1}, v20, v22")
            if j % 32 == 30:
                pend.pop(0)()
        a(f"""
        s_nop 3
        v_add_f32 v21, v21, v22
        v_mov_b32 v22, v21
        s_nop 1
        v_permlane32_swap_b32 v21, v22
        s_nop 1
        v_add_f32 v21, v21, v22
        v_mul_f32 v21, {f32(1.0/512)}, v21
        v_cvt_pk_bf16_f32 v22, v21, v21
        v_and_b32 v22, 0xffff0000, v22
        v_sub_f32 v23, v21, v22
        v_sub_f32 v22, 0, v22
        v_mov_b32 v24, 0
        v_mov_b32 v27, 0
        """)
        for j0 in range(0, 128, 4):
            for q in range(4):
                a(f"v_dot2_f32_bf16 v{28+2*q}, v{XA+j0+q}, v25, v22")
                a(f"v_dot2_f32_bf16 v{29+2*q}, v{XA+j0+q}, v26, v22")
            for q in range(4):
                a(f"v_cvt_pk_bf16_f32 v{XA+j0+q}, v{28+2*q}, v{29+2*q}")
            for q in range(4):
                a(f"v_fmac_f32 v24, v{28+2*q}, v{28+2*q}")
                a(f"v_fmac_f32 v27, v{29+2*q}, v{29+2*q}")
            if j0 % 16 == 12 and pend:
                pend.pop(0)()
        while pend:
            pend.pop(0)()
        if kind != "ffn":
            single_load()
        a(f"""
        s_nop 3
        v_add_f32 v24, v24, v27
        v_mov_b32 v27, v24
        s_nop 1
        v_permlane32_swap_b32 v24, v27
        s_nop 1
        v_add_f32 v24, v24, v27
        v_mul_f32 v24, {f32(1.0/512)}, v24
        v_fma_f32 v24, -v23, v23, v24
        v_max_f32 v24, 0, v24
        v_cvt_pk_bf16_f32 v24, v24, v24
        v_and_b32 v24, 0xffff0000, v24
        v_add_f32 v24, {f32(1e-5)}, v24
        v_cvt_pk_bf16_f32 v24, v24, v24
        v_and_b32 v24, 0xffff0000, v24
        v_sqrt_f32 v24, v24
        s_nop 0
        v_cvt_pk_bf16_f32 v24, v24, v24
        v_and_b32 v24, 0xffff0000, v24
        v_rcp_f32 v24, v24
        """)
        if kind == "v":
            a("s_nop 1")
            for r in range(16):
                a(f"v_lshlrev_b32 v25, 4, v4")
                a(f"v_add_u32 v25, {((r&3) + 8*(r>>2))*4}, v25")
                a(f"ds_bpermute_b32 v{96+r}, v25, v24")
        a("""
        v_lshlrev_b32 v26, 3, v4
        v_and_b32 v27, 15, v2
        v_lshrrev_b32 v27, 2, v27
        v_add_u32 v26, v26, v27
        v_and_b32 v27, 3, v27
        v_lshrrev_b32 v28, 4, v2
        v_and_b32 v28, 1, v28
        v_and_b32 v29, 3, v2
        v_lshlrev_b32 v29, 3, v29
        v_lshl_add_u32 v29, v26, 8, v29
        s_lshl_b32 s43, s41, 1
        """)
        for jj in range(2):
            a(f"s_add_u32 s30, s43, {jj}")
            if kind != "ffn":
                a(f"""
                v_xor_b32 v30, s30, v27
                v_lshl_add_u32 v30, v30, 6, v29
                v_lshl_add_u32 v{16+jj}, v28, 5, v30
                """)
            else:
                a(f"""
                s_xor_b32 s31, s30, 1
                s_add_u32 s31, s31, 4
                v_cmp_ne_u32 vcc, 0, v28
                v_mov_b32 v30, s30
                v_mov_b32 v31, s31
                s_nop 0
                v_cndmask_b32 v30, v30, v31, vcc
                v_lshrrev_b32 v31, 1, v30
                v_xor_b32 v31, v31, v27
                v_and_b32 v30, 1, v30
                v_lshl_add_u32 v31, v31, 6, v29
                v_lshl_add_u32 v{16+jj}, v30, 5, v31
                """)
        if kind != "ffn":
            a("""
            v_lshlrev_b32 v20, 6, v26
            v_lshl_add_u32 v20, v28, 5, v20
            v_and_b32 v30, 3, v2
            v_lshl_add_u32 v20, v30, 3, v20
            v_lshlrev_b32 v22, 5, v5
            v_lshl_add_u32 v22, v4, 4, v22
            v_add_u32 v36, 98304, v20
            """)
        if kind == "v":
            a("""
            v_lshlrev_b32 v21, 4, v2
            s_lshl_b32 s30, s26, 10
            v_add_u32 v21, s30, v21
            """)
        else:
            a("""
            v_lshlrev_b32 v21, 5, v5
            v_lshl_add_u32 v21, v4, 4, v21
            """)
        a(f"""
        v_lshlrev_b32 v6, 13, v4
        v_lshl_add_u32 v6, v3, 1, v6
        v_add_u32 v6, s35, v6
        s_cmp_ge_u32 s52, 1888
        s_cbranch_scc1 {P}_wtd
        s_cmp_ge_u32 s53, 32
        s_cbranch_scc1 {P}_wtb
        s_lshl_b32 s54, s53, 14
        s_add_u32 s27, s54, 4096
        """)
        def wt_loads(srd):
            for i in range(8):
                so = "s54" if i < 4 else "s27"
                a(f"buffer_load_ushort v{26+i}, v6, {srd}, {so} offen offset:{(i&3)*1024}")
        wt_loads("s[44:47]")
        a(f"s_branch {P}_wtd")
        a.label(f"{P}_wtb")
        a("""
        s_sub_u32 s54, s53, 32
        s_lshl_b32 s54, s54, 14
        s_add_u32 s27, s54, 4096
        """)
        wt_loads("s[48:51]")
        a.label(f"{P}_wtd")
        stamp(a, 60)

        def pack_store(A, n4, soff, voff="v21"):
            a(f"""
            s_nop 1
            v_permlane32_swap_b32 v{A}, v{A+2}
            v_permlane32_swap_b32 v{A+1}, v{A+3}
            buffer_store_dwordx4 {vr(A,4)}, {voff}, s[20:23], {soff} offen sc0 sc1
            """)
            vm.add("st", 1)

        SA_ = 112
        def epilogue(units, first_unit_expr, ekind=None, base=None):
            ek = ekind or kind
            ACC_ = base if base is not None else ACC
            a("s_nop 15")
            a(first_unit_expr)
            if ek == "qk":
                a(f"""
                s_cmp_lt_u32 s14, 2
                s_cselect_b32 s31, {f32(QSCALE)}, 1.0
                v_mul_f32 v38, s31, v24
                s_lshl_b32 s30, s30, 17
                """)
                for j in range(units):
                    A = ACC + 16 * j
                    for r in range(16):
                        a(f"v_mul_f32 v{A+r}, v38, v{A+r}")
                    for r in range(8):
                        a(f"v_cvt_pk_bf16_f32 v{A+r}, v{A+2*r}, v{A+2*r+1}")
                    a(f"s_add_u32 s31, s30, {j*131072}")
                    a(f"s_add_u32 s32, s30, {j*131072 + 65536}")
                    pack_store(A, 1, "s31")
                    pack_store(A + 4, 1, "s32")
            elif ek == "v":
                a(f"""
                s_lshl_b32 s30, s30, 11
                s_add_u32 s30, s30, {WS_VT}
                s_waitcnt lgkmcnt(0)
                """)
                for j in range(units):
                    A = ACC + 16 * j
                    for r in range(16):
                        a(f"v_mul_f32 v{A+r}, v{96+r}, v{A+r}")
                    for r in range(8):
                        a(f"v_cvt_pk_bf16_f32 v{A+r}, v{A+2*r}, v{A+2*r+1}")
                    a(f"""
                    s_add_u32 s31, s30, {j*2048}
                    buffer_store_dwordx4 {vr(A,4)}, v21, s[20:23], s31 offen sc0 sc1
                    buffer_store_dwordx4 {vr(A+4,4)}, v21, s[20:23], s31 offen offset:1024 sc0 sc1
                    """)
                    vm.add("st", 2)
            else:
                a(f"""
                s_lshl_b32 s30, s30, 16
                s_add_u32 s30, s30, {WS_A + 32*65536}
                v_mul_f32 v38, {f32(-LOG2E)}, v24
                v_mul_f32 v39, v24, v24
                """)
                for j in range(units):
                    A = ACC_ + 16 * j
                    T = FR
                    for r in range(8):
                        a(f"v_mul_f32 v{T+r}, v38, v{A+r}")
                    for r in range(8):
                        a(f"v_exp_f32 v{T+r}, v{T+r}")
                    for r in range(8):
                        a(f"v_mul_f32 v{A+r}, v{A+r}, v{A+8+r}")
                    for r in range(8):
                        a(f"v_add_f32 v{T+r}, 1.0, v{T+r}")
                    for r in range(8):
                        a(f"v_rcp_f32 v{T+r}, v{T+r}")
                    for r in range(8):
                        a(f"v_mul_f32 v{A+r}, v39, v{A+r}")
                    for r in range(8):
                        a(f"v_mul_f32 v{A+r}, v{T+r}, v{A+r}")
                    for r in range(4):
                        a(f"v_cvt_pk_bf16_f32 v{A+r}, v{A+2*r}, v{A+2*r+1}")
                    a(f"s_add_u32 s31, s30, {j*65536}")
                    pack_store(A, 1, "s31", "v21" if kind == "ffn" else "v22")
            a("s_nop 1")

        for t in range(8):
            g, kq = t >> 2, t & 3
            vm.wait(a, f"w{t}")
            a("s_waitcnt lgkmcnt(0)")
            a("s_barrier")
            if t == 4:
                a(f"""
                s_cmp_ge_u32 s52, 1888
                s_cbranch_scc1 {P}_wts
                v_lshlrev_b32 v6, 4, v2
                v_lshl_or_b32 v26, v27, 16, v26
                v_lshl_or_b32 v27, v29, 16, v28
                v_lshl_or_b32 v28, v31, 16, v30
                v_lshl_or_b32 v29, v33, 16, v32
                buffer_store_dwordx4 v[26:29], v6, s[20:23], s55 offen sc0 sc1
                """)
                a.label(f"{P}_wts")
            pend = []
            if t >= 1:
                if t + 3 < 8:
                    pend = stage_pieces(t + 3)
            buf = BUFS[t % 4]
            for jj in range(2):
                a(f"v_add_u32 v{34+jj}, {buf}, v{16+jj}")
            seq = [(s, jj) for s in range(8) for jj in range(2)]
            def rd(i):
                s, jj = seq[i]
                f = FR + 4 * (i % NFR)
                a(f"ds_read_b64_tr_b16 {vr(f,2)}, v{34+jj} offset:{4096*s}")
                a(f"ds_read_b64_tr_b16 {vr(f+2,2)}, v{34+jj} offset:{4096*s+1024}")
            for i in range(NFR - 1):
                rd(i)
            for i in range(16):
                s, jj = seq[i]
                if i + NFR - 1 < 16:
                    rd(i + NFR - 1)
                a(f"s_waitcnt lgkmcnt({2*min(NFR-1, 15-i)})")
                f = FR + 4 * (i % NFR)
                A = ACC + 16 * jj
                c = "0" if (kq == 0 and s == 0) else vr(A, 16)
                w, x = vr(f, 4), vr(XA + 4 * (kq * 8 + s), 4)
                if kind == "v":
                    a(f"v_mfma_f32_32x32x16_bf16 {vr(A,16)}, {x}, {w}, {c}")
                else:
                    a(f"v_mfma_f32_32x32x16_bf16 {vr(A,16)}, {w}, {x}, {c}")
                if i % 4 == 1 and pend:
                    pend.pop(0)()
            if kind != "ffn" and t >= 4:
                a("s_cmp_lg_u32 s41, 0")
                a(f"s_cbranch_scc1 {P}_sk{t}")
                b0 = 8 * (t - 4)
                def rds(i):
                    f = FR + 4 * (i % NFR)
                    a(f"ds_read_b64_tr_b16 {vr(f,2)}, v36 offset:{1024*(b0+i)}")
                    a(f"ds_read_b64_tr_b16 {vr(f+2,2)}, v36 offset:{1024*(b0+i)+256}")
                for i in range(NFR - 1):
                    rds(i)
                for i in range(8):
                    if i + NFR - 1 < 8:
                        rds(i + NFR - 1)
                    a(f"s_waitcnt lgkmcnt({2*min(NFR-1, 7-i)})")
                    f = FR + 4 * (i % NFR)
                    c = "0" if b0 + i == 0 else vr(SA_, 16)
                    a(f"v_mfma_f32_32x32x16_bf16 {vr(SA_,16)}, {vr(f,4)}, {vr(XA+4*(b0+i),4)}, {c}")
                a.label(f"{P}_sk{t}")
            if kq == 3:
                sub = {"qk": 0, "v": 4, "ffn": 6}[kind]
                fu = f"s_sub_u32 s30, s14, {sub}\ns_lshl_b32 s30, s30, 3\ns_add_u32 s30, s30, {g*4}\ns_add_u32 s30, s30, s43"
                epilogue(2, fu)
        if kind != "ffn":
            a("s_cmp_lg_u32 s41, 0")
            a("s_cbranch_scc1 K1_done")
            epilogue(1, "s_add_u32 s30, s14, 80", "ffn", SA_)
        a("s_branch K1_done")

    path("qk")
    a.label("K1_v")
    path("v")
    a.label("K1_ffn")
    path("ffn")
    a.label("K1_done")
    stamp(a, 60)
    stamp_flush(a, 60, tid=STID)
    a.label("K1_end")
    a("s_endpgm")

def gen_k2(a):
    kernel_head(a, "k2_kernel")
    VROW = 4112
    VBASE = 65536
    a(f"""
    s_cmp_ge_u32 s2, 256
    s_cbranch_scc1 K2_end
    s_load_dwordx2 s[4:5], s[0:1], 72
    v_lshrrev_b32 v1, 6, v0
    v_and_b32 v2, 63, v0
    s_nop 0
    v_readfirstlane_b32 s3, v1
    s_and_b32 s14, s2, 7
    s_lshl_b32 s14, s14, 2
    s_lshr_b32 s15, s2, 3
    s_and_b32 s15, s15, 3
    s_add_u32 s14, s14, s15
    s_lshr_b32 s15, s2, 5
    s_lshl_b32 s16, s15, 8
    s_lshl_b32 s17, s3, 5
    s_add_u32 s16, s16, s17
    s_lshl_b32 s17, s14, 16
    v_and_b32 v3, 31, v2
    v_lshrrev_b32 v4, 5, v2
    v_add_u32 v5, s16, v3
    v_lshlrev_b32 v6, 5, v5
    v_lshl_add_u32 v6, v4, 4, v6
    v_lshlrev_b32 v7, 4, v2
    s_waitcnt lgkmcnt(0)
    s_mov_b32 s8, s4
    s_mov_b32 s9, s5
    s_mov_b32 s10, {WS_SIZE}
    s_mov_b32 s11, 0x00020000
    buffer_load_dwordx4 v[8:11], v6, s[8:11], s17 offen
    s_lshl_b32 s18, s3, 13
    s_add_u32 s19, s17, s18
    s_add_u32 s19, s19, {WS_K}
    """)
    stamp(a, 60)
    a(f"""
    s_lshl_b32 s24, s3, 11
    s_add_u32 s25, s17, s24
    s_add_u32 s25, s25, {WS_K}
    """)
    for p in range(4):
        for i in range(2):
            a(f"""
            s_add_u32 s20, s24, {p*16384 + i*1024}
            s_mov_b32 m0, s20
            s_add_u32 s21, s25, {p*16384 + i*1024}
            buffer_load_dwordx4 v7, s[8:11], s21 offen lds
            """)
    a(f"""
    v_lshrrev_b32 v12, 5, v2
    v_lshlrev_b32 v12, 10, v12
    v_lshrrev_b32 v13, 4, v2
    v_and_b32 v13, 1, v13
    v_lshl_add_u32 v12, v13, 9, v12
    v_and_b32 v13, 15, v2
    v_lshl_add_u32 v12, v13, 4, v12
    s_and_b32 s19, s14, 1
    s_lshl_b32 s19, s19, 8
    s_lshr_b32 s20, s14, 1
    s_lshl_b32 s20, s20, 11
    s_add_u32 s19, s19, s20
    s_lshl_b32 s20, s3, 18
    s_add_u32 s19, s19, s20
    s_add_u32 s19, s19, {WS_VT}
    s_add_u32 s22, s18, {VBASE}
    """)
    for i in range(8):
        a(f"""
        s_add_u32 s20, s22, {i*1024}
        s_mov_b32 m0, s20
        s_add_u32 s21, s19, {i*32768}
        buffer_load_dwordx4 v12, s[8:11], s21 offen lds
        """)
    X = 64
    Y = 128
    FX = 16
    FY = 32
    a(f"""
    v_lshlrev_b32 v12, 5, v3
    v_lshl_add_u32 v12, v4, 4, v12
    v_mov_b32 v13, 0xff7fffff
    v_mov_b32 v14, 0xff7fffff
    """)
    for r in range(64):
        a(f"v_mov_b32 v{Y+r}, 0xff7fffff")
    a("""
    s_waitcnt vmcnt(14)
    s_barrier
    """)
    stamp(a, 60)
    def maxes(S):
        for r in range(0, 16, 4):
            a(f"v_max3_f32 v13, v13, v{S+r}, v{S+r+1}")
            a(f"v_max3_f32 v14, v14, v{S+r+2}, v{S+r+3}")
    for k in range(4):
        a(f"ds_read_b128 {vr(FX+4*k,4)}, v12 offset:{1024*k}")
    for it in range(8):
        for k in range(4):
            a(f"ds_read_b128 {vr(FY+4*k,4)}, v12 offset:{1024*(8*it+4+k)}")
        a("s_waitcnt lgkmcnt(4)")
        for k in range(4):
            a(f"v_mfma_f32_32x32x16_bf16 {vr(X+16*k,16)}, {vr(FX+4*k,4)}, v[8:11], 0")
            maxes(Y + 16 * k)
        if it < 7:
            if it % 2 == 1:
                a(f"s_waitcnt vmcnt({14 - (it+1)})")
                a("s_barrier")
            for k in range(4):
                a(f"ds_read_b128 {vr(FX+4*k,4)}, v12 offset:{1024*(8*it+8+k)}")
            a("s_waitcnt lgkmcnt(4)")
        else:
            a("s_waitcnt lgkmcnt(0)")
        for k in range(4):
            a(f"v_mfma_f32_32x32x16_bf16 {vr(Y+16*k,16)}, {vr(FY+4*k,4)}, v[8:11], 0")
            maxes(X + 16 * k)
    a("s_nop 15")
    for k in range(4):
        maxes(Y + 16 * k)
    stamp(a, 60)
    CM = 48
    SA = 64
    SB = 80
    O = 96
    KB = [16, 20]
    VB = [[24, 28], [32, 36]]
    P = [40, 44]
    a(f"""
    v_max_f32 v13, v13, v14
    v_mov_b32 v14, v13
    s_nop 1
    v_permlane32_swap_b32 v13, v14
    s_nop 1
    v_max_f32 v13, v13, v14
    v_sub_f32 v13, 0, v13
    """)
    for r in range(16):
        a(f"v_mov_b32 v{CM+r}, v13")
        a(f"v_mov_b32 v{O+r}, 0")
    a(f"""
    s_waitcnt lgkmcnt(0)
    v_cmp_eq_u32 vcc, 16, v3
    v_mov_b32 v15, 0x3f803f80
    s_nop 1
    v_cndmask_b32 v15, 0, v15, vcc
    """)
    for r in range(16):
        a(f"v_mov_b32 v{24+r}, v15")
    a(f"""
    v_lshlrev_b32 v12, 5, v3
    v_lshl_add_u32 v12, v4, 4, v12
    v_lshlrev_b32 v15, 4, v3
    v_lshl_add_u32 v15, v4, 8, v15
    v_add_u32 v15, {VBASE}, v15
    s_mov_b32 s26, 0x0000ffff
    s_mov_b32 s27, 0x0000ffff
    s_waitcnt vmcnt(0)
    s_barrier
    ds_read_b128 {vr(KB[0],4)}, v12
    ds_read_b128 {vr(KB[1],4)}, v12 offset:1024
    s_mov_b64 exec, s[26:27]
    ds_read_b128 {vr(VB[0][0],4)}, v15
    ds_read_b128 {vr(VB[0][1],4)}, v15 offset:512
    s_mov_b64 exec, -1
    s_waitcnt lgkmcnt(0)
    v_mfma_f32_32x32x16_bf16 {vr(SA,16)}, {vr(KB[0],4)}, v[8:11], {vr(CM,16)}
    s_mov_b32 s23, 0
    s_and_b32 s36, s3, 1
    s_lshr_b32 s37, s3, 1
    s_and_b32 s37, s37, 1
    s_lshr_b32 s38, s3, 2
    s_lshl_b32 s39, s14, 1
    s_add_u32 s39, s39, s36
    s_lshl_b32 s40, s15, 1
    s_add_u32 s40, s40, s37
    s_add_u32 s41, s38, 32
    s_lshl_b32 s42, s41, 16
    s_lshl_b32 s43, s39, 10
    s_add_u32 s42, s42, s43
    s_add_u32 s42, s42, {WS_A}
    s_mul_i32 s43, s40, 118
    s_add_u32 s43, s43, s41
    s_lshl_b32 s43, s43, 10
    s_add_u32 s43, s43, {WS_WT}
    """)
    a("""
    v_lshlrev_b32 v160, 5, v3
    v_lshl_add_u32 v160, v4, 4, v160
    """)
    GA = 112
    GR = 128
    def gload(i):
        f = GR + 8 * (i % 4)
        a(f"""
        buffer_load_dwordx4 {vr(f,4)}, v160, s[8:11], s42 offen
        buffer_load_dwordx4 {vr(f+4,4)}, v7, s[8:11], s43 offen
        s_add_u32 s42, s42, 131072
        s_add_u32 s43, s43, 2048
        """)
    gload(0)
    gload(1)
    S = [SA, SB]
    def tile(t, g, gl, first):
        u = t & 1
        cur, nxt = S[u], S[1 - u]
        a(f"""
        s_waitcnt lgkmcnt(0)
        ds_read_b128 {vr(KB[u],4)}, v12 offset:{1024*(t+2)}
        s_mov_b64 exec, s[26:27]
        ds_read_b128 {vr(VB[1-u][0],4)}, v15 offset:{1024*(t+1)}
        ds_read_b128 {vr(VB[1-u][1],4)}, v15 offset:{1024*(t+1)+512}
        s_mov_b64 exec, -1
        v_mfma_f32_32x32x16_bf16 {vr(nxt,16)}, {vr(KB[1-u],4)}, v[8:11], {vr(CM,16)}
        """)
        if gl:
            gload(t + 2)
        for r in range(8):
            a(f"v_exp_f32 v{cur+r}, v{cur+r}")
        for r in range(4):
            a(f"v_cvt_pk_bf16_f32 v{P[0]+r}, v{cur+2*r}, v{cur+2*r+1}")
        for r in range(8, 16):
            a(f"v_exp_f32 v{cur+r}, v{cur+r}")
        a(f"v_mfma_f32_32x32x16_bf16 {vr(O,16)}, {vr(VB[u][0],4)}, {vr(P[0],4)}, {vr(O,16)}")
        for r in range(4):
            a(f"v_cvt_pk_bf16_f32 v{P[1]+r}, v{cur+8+2*r}, v{cur+8+2*r+1}")
        if g is not None:
            f = GR + 8 * (t % 4)
            a(f"s_waitcnt vmcnt({g})")
            c = "0" if first else vr(GA, 16)
            a(f"v_mfma_f32_32x32x16_bf16 {vr(GA,16)}, {vr(f+4,4)}, {vr(f,4)}, {c}")
        else:
            a("s_nop 1")
        a(f"v_mfma_f32_32x32x16_bf16 {vr(O,16)}, {vr(VB[u][1],4)}, {vr(P[1],4)}, {vr(O,16)}")
    def advance():
        a("""
        v_add_u32 v12, 4096, v12
        v_add_u32 v15, 4096, v15
        """)
    stamp(a, 60)
    for t in range(4):
        tile(t, 4, True, t == 0)
    advance()
    a.label("K2_p2a")
    for t in range(4):
        tile(t, 4, True, False)
    advance()
    a("""
    s_add_u32 s23, s23, 1
    s_cmp_lt_u32 s23, 9
    s_cbranch_scc1 K2_p2a
    """)
    tile(0, 4, True, False)
    tile(1, 2, False, False)
    tile(2, 0, False, False)
    tile(3, None, False, False)
    advance()
    a("s_mov_b32 s23, 0")
    a.label("K2_p2b")
    for t in range(4):
        tile(t, None, False, False)
    advance()
    a(f"""
    s_add_u32 s23, s23, 1
    s_cmp_lt_u32 s23, 5
    s_cbranch_scc1 K2_p2b
    s_nop 15
    s_waitcnt lgkmcnt(0)
    s_barrier
    s_and_b32 s44, s3, 3
    s_lshl_b32 s44, s44, 12
    v_add_u32 v16, s44, v7
    s_cmp_eq_u32 s38, 0
    s_cbranch_scc1 K2_red
    ds_write_b128 v16, {vr(GA,4)}
    ds_write_b128 v16, {vr(GA+4,4)} offset:1024
    ds_write_b128 v16, {vr(GA+8,4)} offset:2048
    ds_write_b128 v16, {vr(GA+12,4)} offset:3072
    s_waitcnt lgkmcnt(0)
    s_barrier
    s_branch K2_fin
    """)
    a.label("K2_red")
    a(f"""
    s_barrier
    ds_read_b128 v[20:23], v16
    ds_read_b128 v[24:27], v16 offset:1024
    ds_read_b128 v[28:31], v16 offset:2048
    ds_read_b128 v[32:35], v16 offset:3072
    s_lshl_b32 s44, s39, 4
    s_add_u32 s44, s44, s40
    s_lshl_b32 s44, s44, 12
    s_add_u32 s44, s44, {WS_P}
    s_waitcnt lgkmcnt(0)
    """)
    for r in range(16):
        a(f"v_add_f32 v{GA+r}, v{20+r}, v{GA+r}")
    for q in range(4):
        a(f"buffer_store_dwordx4 {vr(GA+4*q,4)}, v7, s[8:11], s44 offen offset:{1024*q}")
    a.label("K2_fin")
    a(f"""
    v_mov_b32 v13, v{O+8}
    v_mov_b32 v14, v{O+8}
    s_nop 1
    v_permlane32_swap_b32 v13, v14
    s_nop 1
    v_rcp_f32 v13, v13
    s_nop 0
    """)
    for r in range(8):
        a(f"v_mul_f32 v{O+r}, v13, v{O+r}")
    for r in range(4):
        a(f"v_cvt_pk_bf16_f32 v{40+r}, v{O+2*r}, v{O+2*r+1}")
    a(f"""
    v_lshlrev_b32 v6, 5, v5
    v_lshl_add_u32 v6, v4, 3, v6
    s_add_u32 s20, s17, {WS_A}
    buffer_store_dwordx2 v[40:41], v6, s[8:11], s20 offen
    buffer_store_dwordx2 v[42:43], v6, s[8:11], s20 offen offset:16
    """)
    stamp(a, 60)
    stamp_flush(a, 60, tid=STID)
    a.label("K2_end")
    a("s_endpgm")

def gen_k3(a):
    kernel_head(a, "k3_kernel")
    ACC = 16
    PB = 32
    XB = 48
    RING = 64
    a(f"""
    s_cmp_ge_u32 s2, 256
    s_cbranch_scc1 K3_end
    s_load_dwordx2 s[4:5], s[0:1], 0
    s_load_dwordx2 s[10:11], s[0:1], 56
    s_load_dwordx2 s[12:13], s[0:1], 72
    v_lshrrev_b32 v1, 6, v0
    v_and_b32 v2, 63, v0
    s_nop 0
    v_readfirstlane_b32 s3, v1
    s_and_b32 s14, s2, 7
    s_lshl_b32 s14, s14, 2
    s_lshr_b32 s15, s2, 3
    s_and_b32 s15, s15, 3
    s_add_u32 s14, s14, s15
    s_lshr_b32 s15, s2, 5
    s_and_b32 s36, s3, 1
    s_lshr_b32 s37, s3, 1
    s_lshl_b32 s39, s14, 1
    s_add_u32 s39, s39, s36
    s_lshl_b32 s40, s15, 1
    s_add_u32 s40, s40, s37
    v_and_b32 v3, 31, v2
    v_lshrrev_b32 v4, 5, v2
    s_lshl_b32 s38, s39, 5
    v_add_u32 v5, s38, v3
    v_lshlrev_b32 v7, 4, v2
    v_lshlrev_b32 v8, 5, v3
    v_lshl_add_u32 v8, v4, 4, v8
    s_waitcnt lgkmcnt(0)
    s_mov_b32 s16, s4
    s_mov_b32 s17, s5
    s_mov_b32 s18, 0x200000
    s_mov_b32 s19, 0x00020000
    s_mov_b32 s28, s10
    s_mov_b32 s29, s11
    s_mov_b32 s30, 0x200000
    s_mov_b32 s31, 0x00020000
    s_mov_b32 s32, s12
    s_mov_b32 s33, s13
    s_mov_b32 s34, {WS_SIZE}
    s_mov_b32 s35, 0x00020000
    s_lshl_b32 s42, s39, 10
    s_add_u32 s42, s42, {WS_A}
    s_mul_i32 s43, s40, {118*1024}
    s_add_u32 s43, s43, {WS_WT}
    s_lshl_b32 s44, s39, 4
    s_add_u32 s44, s44, s40
    s_lshl_b32 s44, s44, 12
    s_add_u32 s44, s44, {WS_P}
    v_lshlrev_b32 v6, 10, v5
    v_lshl_add_u32 v6, v4, 4, v6
    s_lshl_b32 s45, s40, 6
    """)
    stamp(a, 60)
    def ld(i):
        f = RING + 8 * (i % 16)
        a(f"""
        buffer_load_dwordx4 {vr(f,4)}, v8, s[32:35], s42 offen
        buffer_load_dwordx4 {vr(f+4,4)}, v7, s[32:35], s43 offen
        s_add_u32 s42, s42, 65536
        s_add_u32 s43, s43, 1024
        """)
    for i in range(16):
        ld(i)
    for q in range(4):
        a(f"buffer_load_dwordx4 {vr(PB+4*q,4)}, v7, s[32:35], s44 offen offset:{1024*q}")
    a("buffer_load_dwordx4 v[48:51], v6, s[16:19], s45 offen")
    a("buffer_load_dwordx4 v[52:55], v6, s[16:19], s45 offen offset:32")
    for i in range(32):
        if i < 16:
            n = 2 * (15 - i) + 6 + 2 * i
        else:
            n = 2 * (31 - i)
        a(f"s_waitcnt vmcnt({n})")
        f = RING + 8 * (i % 16)
        c = "0" if i == 0 else vr(ACC, 16)
        a(f"v_mfma_f32_32x32x16_bf16 {vr(ACC,16)}, {vr(f+4,4)}, {vr(f,4)}, {c}")
        if i < 16:
            ld(i + 16)
    a("s_nop 15")
    for r in range(16):
        a(f"v_add_f32 v{ACC+r}, v{PB+r}, v{ACC+r}")
    for q in range(2):
        B = ACC + 8 * q
        a(f"""
        v_permlane32_swap_b32 v{B}, v{B+4}
        v_permlane32_swap_b32 v{B+1}, v{B+5}
        v_permlane32_swap_b32 v{B+2}, v{B+6}
        v_permlane32_swap_b32 v{B+3}, v{B+7}
        """)
    for q in range(2):
        B = ACC + 8 * q
        for r in range(4):
            a(f"""
            v_lshlrev_b32 v40, 16, v{XB+4*q+r}
            v_and_b32 v41, 0xffff0000, v{XB+4*q+r}
            v_add_f32 v{B+2*r}, v40, v{B+2*r}
            v_add_f32 v{B+2*r+1}, v41, v{B+2*r+1}
            v_cvt_pk_bf16_f32 v{56+4*q+r}, v{B+2*r}, v{B+2*r+1}
            """)
    a("""
    buffer_store_dwordx4 v[56:59], v6, s[28:31], s45 offen
    buffer_store_dwordx4 v[60:63], v6, s[28:31], s45 offen offset:32
    """)
    stamp(a, 60)
    stamp_flush(a, 60)
    a.label("K3_end")
    a("s_endpgm")

def main():
    a = Asm()
    a.raw("; @launch kernel=k1_kernel grid=(256,1,1) block=(512,1,1) lds=163840")
    a.raw("; @launch kernel=k2_kernel grid=(256,1,1) block=(512,1,1) lds=133120")
    a.raw("; @launch kernel=k3_kernel grid=(256,1,1) block=(256,1,1) lds=0")
    a.raw('.amdgcn_target "amdgcn-amd-amdhsa--gfx950"')
    a.raw(".text")
    gen_k1(a)
    gen_k2(a)
    gen_k3(a)
    a.raw('.section .rodata,"a"')
    a.raw(".p2align 6")
    a.raw(descriptor("k1_kernel", 256))
    a.raw(".p2align 6")
    a.raw(descriptor("k2_kernel", 192))
    a.raw(".p2align 6")
    a.raw(descriptor("k3_kernel", 192))
    open(OUT, "w").write(a.text())

main()
```
